```python
import torch

def _softmax(x, axis=-1):
    return torch.softmax(x, dim=axis)
def _gelu(x):
    return torch.nn.functional.gelu(x, approximate="tanh")
def _silu(x):
    return torch.nn.functional.silu(x)
def _sigmoid(x):
    return torch.sigmoid(x)
def _layernorm(x, axis=-1, eps=1e-5):
    m = x.mean(dim=axis, keepdim=True)
    v = x.var(dim=axis, keepdim=True, unbiased=False)
    return (x - m) / torch.sqrt(v + eps)
def _scatter_add(tgt, idx, src, axis=0):
    return tgt.clone().index_add_(axis, idx, src)
def _segment_sum(src, seg, n):
    out = torch.zeros((n,) + src.shape[1:], dtype=src.dtype)
    return out.index_add_(0, seg, src)
def _pad(x, pw):
    flat = tuple(v for pair in reversed(pw) for v in pair)
    return torch.nn.functional.pad(x, flat)

kernel_name = 'recurrent_scan__sliding_block_cached__glu_gated_bilinear__decode'

def setup_inputs():

    _w = (lambda a: (lambda t: t.to(torch.bfloat16) if t.is_floating_point() else t)(torch.as_tensor(a)))
    def _A_setup():
        B, Sq, D = 1, 1, 640
        Hq, Hkv, Sk, Dh = 32, 32, 8192, 192
        assert Hq % Hkv == 0, (Hq, Hkv)
        return {
            "x": _w((lambda *s: torch.randn(*s, dtype=torch.bfloat16) * 0.2)(B, Sq, D)),
            "k_cache": _w((lambda *s: torch.randn(*s, dtype=torch.bfloat16) * 1.6)(B, Hkv, Sk, Dh)),
            "v_cache": _w((lambda *s: torch.randn(*s, dtype=torch.bfloat16) * 1.6)(B, Hkv, Sk, Dh)),
            "wq": _w((lambda *s: torch.randn(*s, dtype=torch.bfloat16) * 1.6)(D, Hq * Dh) * (D ** -0.5)),
            "wo": _w((lambda *s: torch.randn(*s, dtype=torch.bfloat16) * 1.6)(Hq * Dh, D) * ((Hq * Dh) ** -0.5)),
        }
    _A_in = _A_setup()

    def _B_setup():
        B, S, D, F = 1, 1, 640, 1536
        return {
            "x": _w((lambda *s: torch.randn(*s, dtype=torch.bfloat16) * 0.2)(B, S, D)),
            "w_gate": _w((lambda *s: torch.randn(*s, dtype=torch.bfloat16) * 0.8)(D, F) * (D ** -0.5)),
            "w_up": _w((lambda *s: torch.randn(*s, dtype=torch.bfloat16) * 0.8)(D, F) * (D ** -0.5)),
            "w_down": _w((lambda *s: torch.randn(*s, dtype=torch.bfloat16) * 0.8)(F, D) * (F ** -0.5)),
        }
    _B_in = _B_setup()

    return {
        "A_x": _A_in["x"],
        "A_k_cache": _A_in["k_cache"],
        "A_v_cache": _A_in["v_cache"],
        "A_wq": _A_in["wq"],
        "A_wo": _A_in["wo"],
        "B_x": _B_in["x"],
        "B_w_gate": _B_in["w_gate"],
        "B_w_up": _B_in["w_up"],
        "B_w_down": _B_in["w_down"],
    }

def reference(A_x, A_k_cache, A_v_cache, A_wq, A_wo, B_x, B_w_gate, B_w_up, B_w_down):
    def _A_ref(x, k_cache, v_cache, wq, wo):
        B, Sq, D = x.shape
        Hq, Dh = 32, 192
        Hkv, Sk = k_cache.shape[1], k_cache.shape[2]
        W = min(4096, max(256, Sk // 4))
        rep = Hq // Hkv
        q = (lambda x, *d: x.permute(*d))((x @ wq).reshape(B, Sq, Hq, Dh), 0, 2, 1, 3)
        k = (lambda x, n, axis: torch.repeat_interleave(x, n, dim=axis))(k_cache[:, :, Sk - W:, :], rep, axis=1)
        v = (lambda x, n, axis: torch.repeat_interleave(x, n, dim=axis))(v_cache[:, :, Sk - W:, :], rep, axis=1)
        scores = torch.einsum("bhqd,bhkd->bhqk", q, k) * (Dh ** -0.5)
        p = _softmax(scores, axis=-1)
        o = torch.einsum("bhqk,bhkd->bhqd", p, v)
        return (lambda x, *d: x.permute(*d))(o, 0, 2, 1, 3).reshape(B, Sq, Hq * Dh) @ wo

    def _B_ref(x, w_gate, w_up, w_down):
        g = torch.einsum("bsd,df->bsf", x, w_gate)
        u = torch.einsum("bsd,df->bsf", x, w_up)
        h = g * u
        return torch.einsum("bsf,fd->bsd", h, w_down)

    x = A_x
    xn = _layernorm(x, axis=-1)
    s = _A_ref(xn, A_k_cache, A_v_cache, A_wq, A_wo)
    g = _silu(_B_ref(xn, B_w_gate, B_w_up, B_w_down))
    return x + s * g
```

```python
import re

_REG = re.compile(r"\b([vsa])(\d+)\b|\b([vsa])\[(\d+):(\d+)\]|\b(vcc|exec|m0)\b")
TRANS = ("v_exp_f32", "v_log_f32", "v_rcp_f32", "v_rsq_f32", "v_sqrt_f32", "v_sin_f32", "v_cos_f32")


def regs_of(op):
    out = []
    for m in _REG.finditer(op):
        if m.group(1):
            out.append((m.group(1), int(m.group(2))))
        elif m.group(3):
            for i in range(int(m.group(4)), int(m.group(5)) + 1):
                out.append((m.group(3), i))
        else:
            out.append((m.group(6), 0))
    return out


def split_ops(s):
    ops, depth, cur = [], 0, ""
    for ch in s:
        if ch == "[":
            depth += 1
        elif ch == "]":
            depth -= 1
        if ch == "," and depth == 0:
            ops.append(cur.strip())
            cur = ""
        else:
            cur += ch
    if cur.strip():
        ops.append(cur.strip())
    return ops


class Ins:
    __slots__ = ("text", "mn", "cls", "wr", "rd", "srcc", "sdata", "dpp", "trans", "ws")


class Emitter:
    def __init__(self):
        self.lines = []
        self.hist = []
        self.nlabel = 0

    def parse(self, text):
        t = text.split(";")[0].strip()
        parts = t.split(None, 1)
        mn = parts[0]
        rest = parts[1] if len(parts) > 1 else ""
        ins = Ins()
        ins.text = text
        ins.mn = mn
        ins.srcc = []
        ins.sdata = []
        ins.dpp = "_dpp" in mn
        ins.trans = any(mn.startswith(x) for x in TRANS)
        ins.ws = 1
        ops = split_ops(rest)
        opregs = [regs_of(o.split(" quad_perm")[0].split(" row_")[0]) for o in ops]
        wr, rd = [], []
        if mn.startswith("v_mfma"):
            ins.cls = "mfma"
            wr = opregs[0]
            rd = opregs[1] + opregs[2] + opregs[3]
            ins.srcc = opregs[3]
        elif mn.startswith("v_"):
            ins.cls = "valu"
            if mn.startswith("v_permlane") and "swap" in mn:
                wr = opregs[0] + opregs[1]
                rd = opregs[0] + opregs[1]
            elif mn.startswith("v_nop"):
                pass
            else:
                wr = opregs[0]
                for o in opregs[1:]:
                    rd += o
                if mn.startswith(("v_fmac", "v_dot2c", "v_writelane")) or ins.dpp or "sdwa" in mn:
                    rd += opregs[0]
                if mn.startswith(("v_add_co", "v_sub_co", "v_addc_co", "v_subb_co", "v_mad_u64")):
                    wr = opregs[0] + opregs[1]
                    rd = [r for o in opregs[2:] for r in o]
                if mn.startswith("v_cmpx"):
                    raise ValueError("v_cmpx unsupported")
        elif mn.startswith(("buffer_", "global_")):
            ins.cls = "vmem"
            if "atomic" in mn:
                wr = opregs[0]
                for o in opregs:
                    rd += o
            elif "load" in mn:
                wr = opregs[0]
                for o in opregs[1:]:
                    rd += o
            else:
                for o in opregs:
                    rd += o
                if mn.endswith(("x3", "x4")):
                    ins.sdata = opregs[0] if mn.startswith("buffer_") else opregs[1]
        elif mn.startswith("ds_"):
            ins.cls = "ds"
            if mn.startswith(("ds_read", "ds_bpermute", "ds_permute", "ds_swizzle")) or "rtn" in mn:
                wr = opregs[0]
                for o in opregs[1:]:
                    rd += o
            else:
                for o in opregs:
                    rd += o
        elif mn.startswith("s_"):
            ins.cls = "salu"
            if mn == "s_nop":
                ins.ws = int(rest, 0) + 1
            elif mn.startswith(("s_cmp", "s_waitcnt", "s_cbranch", "s_branch", "s_barrier", "s_sleep", "s_setprio",
                                "s_endpgm", "s_bitcmp")):
                for o in opregs:
                    rd += o
            else:
                wr = opregs[0] if opregs else []
                for o in opregs[1:]:
                    rd += o
        else:
            raise ValueError("unknown instruction " + text)
        ins.wr, ins.rd = wr, rd
        return ins

    def need(self, p, c):
        n = 0
        pw = set(p.wr)
        cr = set(c.rd)
        cw = set(c.wr)
        if p.cls == "valu":
            pv = {r for r in pw if r[0] in "va"}
            ps = {r for r in pw if r[0] in ("s", "vcc")}
            if pv & cr:
                if c.cls == "valu" and c.dpp:
                    n = max(n, 2)
                if c.mn.startswith(("v_readlane", "v_readfirstlane")):
                    n = max(n, 1)
                if c.mn.startswith("v_permlane"):
                    n = max(n, 2)
                if c.cls == "mfma":
                    n = max(n, 2)
                if p.trans and c.cls in ("valu", "mfma", "vmem", "ds"):
                    n = max(n, 1)
                if "sdwa" in p.mn or "op_sel" in p.text:
                    n = max(n, 1)
            if ps & cr:
                if c.cls in ("valu", "mfma"):
                    n = max(n, 4 if c.mn.startswith(("v_readlane", "v_writelane")) else 2)
                if c.cls == "vmem":
                    n = max(n, 5)
        if p.cls == "mfma":
            passes = 4 if "16x16x32" in p.mn else (8 if "32x32x16" in p.mn else 16)
            big = {4: 8, 8: 12, 16: 20}[passes]
            if c.cls == "mfma":
                ab = set(c.rd) - set(c.srcc)
                if pw & ab:
                    n = max(n, big)
                if pw & set(c.srcc):
                    if list(p.wr) == list(c.srcc) and p.mn == c.mn:
                        pass
                    else:
                        n = max(n, big - 2)
                elif pw & cw:
                    n = max(n, big)
            else:
                if pw & (cr | cw):
                    n = max(n, big)
            if c.cls == "valu" and set(p.srcc) & cw:
                n = max(n, passes - 1)
        if p.cls == "vmem" and p.sdata:
            if set(p.sdata) & cw:
                n = max(n, 2)
        return n

    def worst(self, p):
        if p.cls == "valu":
            if any(r[0] == "s" for r in p.wr):
                return 5
            if p.wr:
                return 2
        if p.cls == "mfma":
            return 8 if "16x16x32" in p.mn else 20
        if p.cls == "vmem" and p.sdata:
            return 2
        return 0

    def _push(self, ins):
        self.hist = [(i, d + ins.ws) for (i, d) in self.hist if d + ins.ws < 24]
        self.hist.append((ins, 0))
        self.lines.append("    " + ins.text)

    def nop(self, n):
        while n > 0:
            k = min(n, 16)
            self._push(self.parse(f"s_nop {k - 1}"))
            n -= k

    def I(self, text, safe_branch=False):
        ins = self.parse(text)
        pad = 0
        for (p, d) in self.hist:
            pad = max(pad, self.need(p, ins) - d)
        if ins.mn.startswith(("s_cbranch", "s_branch")) and not safe_branch:
            for (p, d) in self.hist:
                pad = max(pad, self.worst(p) - d - 1)
        if pad > 0:
            self.nop(pad)
        self._push(ins)

    def __call__(self, text, **kw):
        for line in text.strip().split("\n"):
            line = line.strip()
            if not line or line.startswith(";"):
                if line:
                    self.lines.append("    " + line)
                continue
            self.I(line, **kw)

    def label(self, name):
        self.lines.append(f"{name}:")

    def newlabel(self, base="L"):
        self.nlabel += 1
        return f".{base}{self.nlabel}"

    def raw(self, text):
        self.lines.append(text)

    def comment(self, text):
        self.lines.append("    ; " + text)

    def text(self):
        return "\n".join(self.lines) + "\n"
```

```python
import sys, struct
from asmlib import Emitter

NAME = "recurrent_scan__sliding_block_cached__glu_gated_bilinear__decode"

def f2u(f):
    return struct.unpack("<I", struct.pack("<f", f))[0]

QP = 0x0
QID = 0x30000
GID = 0x38000
GU = 0x40000
OP = 0x80000
BOFF = 0x100000
ZP = 0x200000
YP = 0x220000
WS_USED = 0x240000
STAMP = 0x300000
QBUF = 0
MSL = 384
LSL = 416
QFL = 448
HBUF = 464
OPART = 1024
YPART = OPART + 16 * 768
LDS_BYTES = YPART + 8 * 384

SPIN_MAX = 200000
FALLBACK = 64
LOG2E = 1.4426950408889634


def gen(stamps=False, TH=3, floor=False, wo_late=6, badmap=0, qs0=40, qs1=16, gs0=60, mss=2, zs=16, rot=10100, spank=0, yb0=0, yb1=0, wo_pos=1, ylay=0):
    e = Emitter()
    POL = " nt"
    hdr = open("cdna_kernels/%s.s.ref" % NAME).read().split("; Override launch")[0]
    e.raw(hdr.rstrip("\n"))
    e.raw(f"; @launch grid=(256,1,1) block=(768,1,1) lds={LDS_BYTES}")
    e.raw('.amdgcn_target "amdgcn-amd-amdhsa--gfx950"')
    e.raw(".text")
    e.raw(f".globl {NAME}_kernel")
    e.raw(".p2align 8")
    e.raw(f".type {NAME}_kernel,@function")
    e.raw(f"{NAME}_kernel:")

    def stamp(i):
        if stamps:
            e(f"s_memrealtime s[{84 + 2 * i}:{85 + 2 * i}]")

    def stamps_flush(n):
        if not stamps:
            return
        e("s_waitcnt lgkmcnt(0)")
        e("s_mul_i32 s7, s6, 12")
        e("s_add_u32 s7, s7, s3")
        e("s_lshl_b32 s7, s7, 6")
        e(f"s_add_u32 s7, s7, {STAMP}")
        e("s_add_u32 s8, s38, s7")
        e("s_addc_u32 s9, s39, 0")
        e("s_mov_b32 s10, 64")
        e("s_mov_b32 s11, 0x20000")
        e("s_mov_b64 exec, 1")
        e("v_mov_b32 v1, 0")
        for i in range(n):
            e(f"v_mov_b32 v2, s{84 + 2 * i}")
            e(f"buffer_store_dword v2, v1, s[8:11], 0 offen offset:{4 * i}")
        e("s_waitcnt vmcnt(0)")

    def srd(d, blo, off, nbytes):
        if off is None:
            e(f"s_mov_b32 s{d}, s{blo}")
            e(f"s_mov_b32 s{d + 1}, s{blo + 1}")
        else:
            e(f"s_add_u32 s{d}, s{blo}, {off}")
            e(f"s_addc_u32 s{d + 1}, s{blo + 1}, 0")
        e(f"s_mov_b32 s{d + 2}, {nbytes}")
        e(f"s_mov_b32 s{d + 3}, 0x20000")

    def spin_check(lbl_retry, mult=1):
        e("s_add_u32 s80, s80, 1")
        e(f"s_cmp_lt_u32 s80, {SPIN_MAX * mult}")
        e(f"s_cbranch_scc1 {lbl_retry}")
        e("s_branch .Lend")

    def fallback_retry(tg, lbl_retry, vaddrs, storeB):
        e("s_add_u32 s80, s80, 1")
        e(f"s_cmp_lt_u32 s80, {FALLBACK}")
        e(f"s_cbranch_scc1 {lbl_retry}")
        e("s_cmp_lg_u32 s82, 0")
        e(f"s_cbranch_scc1 .Lfb_{tg}")
        storeB()
        e("s_mov_b32 s82, 1")
        e.label(f".Lfb_{tg}")
        for v in vaddrs:
            e(f"v_xor_b32 v{v}, 0x{BOFF:x}, v{v}")
        e(f"s_cmp_lt_u32 s80, {SPIN_MAX}")
        e(f"s_cbranch_scc1 {lbl_retry}")
        e("s_branch .Lend")

    def xcc_check(tg, vid, tmp, storeB):
        e("s_mov_b32 s80, 0")
        e("s_mov_b32 s83, 0")
        e(f"v_lshrrev_b32 v{tmp}, 8, v{vid}")
        e(f"v_cmp_ne_u32 vcc, s65, v{tmp}")
        e(f"s_cbranch_vccz .Lxc_{tg}")
        e(f"s_mov_b32 s83, 0x{BOFF:x}")
        e("s_cmp_lg_u32 s82, 0")
        e(f"s_cbranch_scc1 .Lxc_{tg}")
        storeB()
        e.label(f".Lxc_{tg}")

    NS = ["s81", "s61", "s62", "s63"]
    VFF = 31

    def nonce_regs():
        for k in range(1, 4):
            e(f"s_lshr_b32 {NS[k]}, s81, {8 * k}")

    def tag(dst, src, n):
        e(f"v_bfi_b32 v{dst}, v{VFF}, {n}, v{src}")

    def tags_ok(pairs, acc, ok_label):
        for i, (w, n) in enumerate(pairs):
            if i == 0:
                e(f"v_xor_b32 v{acc}, {n}, v{w}")
            else:
                e(f"v_bitop3_b32 v{acc}, v{acc}, v{w}, {n} bitop3:0xf6")
        e(f"v_and_b32 v{acc}, v{VFF}, v{acc}")
        e(f"v_cmp_ne_u32 vcc, 0, v{acc}")
        e(f"s_cbranch_vccz {ok_label}", safe_branch=True)

    def untag(regs):
        for r in regs:
            e(f"v_and_b32 v{r}, 0xffffff00, v{r}")

    SEL = 32

    def selectors(t0, t1, t2):
        e(f"v_bfe_u32 v{t0}, v0, 3, 1")
        e(f"v_mul_u32_u24 v{t0}, 0x202, v{t0}")
        e(f"v_add_u32 v{t0}, 0x100, v{t0}")
        e(f"v_and_b32 v{t1}, 1, v0")
        e(f"v_lshlrev_b32 v{t1}, 4, v{t1}")
        e(f"v_lshlrev_b32 v{t0}, v{t1}, v{t0}")
        e(f"v_mov_b32 v{t2}, 0x0c0c0000")
        e(f"v_lshrrev_b32 v{t2}, v{t1}, v{t2}")
        e(f"v_or_b32 v{t0}, v{t0}, v{t2}")
        e(f"v_bfe_u32 v{t1}, v0, 1, 2")
        e(f"v_mov_b32 v{t2}, 0x0c0c0c0c")
        for k in range(4):
            e(f"v_cmp_eq_u32 vcc, {k}, v{t1}")
            e(f"v_cndmask_b32 v{SEL + k}, v{t2}, v{t0}, vcc")

    DPPM = "row_mask:0xf bank_mask:0xf"
    P8 = ("quad_perm:[1,0,3,2]", "quad_perm:[2,3,0,1]", "row_half_mirror")
    P16 = P8 + ("row_mirror",)

    def row_sum(v):
        for pat in P16:
            e(f"v_add_f32_dpp v{v}, v{v}, v{v} {pat} {DPPM}")

    def rows4(v, op):
        for i in range(4):
            e(f"v_readlane_b32 s{12 + i}, v{v}, {16 * i}")
        e(f"v_mov_b32 v{v}, s12")
        for i in range(1, 4):
            e(f"{op} v{v}, s{12 + i}, v{v}")

    def bf16r(v, t):
        e(f"v_cvt_pk_bf16_f32 v{t}, v{v}, v{v}")
        e(f"v_lshlrev_b32 v{v}, 16, v{t}")

    def mfma(d, a, b, first):
        e(f"v_mfma_f32_16x16x32_bf16 v[{d}:{d + 3}], v[{a}:{a + 3}], v[{b}:{b + 3}], "
          + ("0" if first else f"v[{d}:{d + 3}]"))

    def rows_sum4(b, t):
        for sw in ("v_permlane16_swap_b32", "v_permlane32_swap_b32"):
            for r in range(4):
                e(f"v_mov_b32 v{t + r}, v{b + r}")
            for r in range(4):
                e(f"{sw} v{b + r}, v{t + r}")
            for r in range(4):
                e(f"v_add_f32 v{b + r}, v{b + r}, v{t + r}")

    def col_sum(b):
        e(f"v_permlane32_swap_b32 v{b}, v{b + 1}")
        e(f"v_permlane32_swap_b32 v{b + 2}, v{b + 3}")
        e(f"v_add_f32 v{b}, v{b}, v{b + 1}")
        e(f"v_add_f32 v{b + 2}, v{b + 2}, v{b + 3}")
        e(f"v_permlane16_swap_b32 v{b}, v{b + 2}")
        e(f"v_add_f32 v{b}, v{b}, v{b + 2}")
        for pat in ("row_ror:2", "row_ror:4", "row_ror:8"):
            e(f"v_add_f32_dpp v{b}, v{b}, v{b} {pat} {DPPM}")

    def round4(b, t):
        e(f"v_cvt_pk_bf16_f32 v{t}, v{b}, v{b + 1}")
        e(f"v_cvt_pk_bf16_f32 v{t + 1}, v{b + 2}, v{b + 3}")
        e(f"v_lshlrev_b32 v{b}, 16, v{t}")
        e(f"v_and_b32 v{b + 1}, 0xffff0000, v{t}")
        e(f"v_lshlrev_b32 v{b + 2}, 16, v{t + 1}")
        e(f"v_and_b32 v{b + 3}, 0xffff0000, v{t + 1}")

    SX, SW, SU, SD, SWS, SDBG = 40, 44, 48, 52, 56, 60
    WSR = f"s[{SWS}:{SWS + 3}]"
    e("s_cmp_ge_u32 s2, 256")
    e("s_cbranch_scc1 .Lend")
    e("s_load_dwordx16 s[16:31], s[0:1], 0")
    e("s_load_dwordx8 s[32:39], s[0:1], 64")
    e("s_memrealtime s[72:73]")
    if stamps:
        for i in range(1, 8):
            e(f"s_mov_b32 s{84 + 2 * i}, 0")
    stamp(0)
    e("v_lshrrev_b32 v1, 6, v0")
    e("v_and_b32 v0, 63, v0")
    e("v_readfirstlane_b32 s3, v1")
    if badmap == 2:
        e("s_lshr_b32 s7, s2, 7")
        e("s_xor_b32 s2, s2, s7")
        e("s_lshr_b32 s7, s2, 3")
        e("s_and_b32 s7, s7, 1")
        e("s_xor_b32 s2, s2, s7")
    if badmap == 3:
        e("s_lshr_b32 s7, s2, 6")
        e("s_and_b32 s7, s7, 1")
        e("s_xor_b32 s2, s2, s7")
    e("s_and_b32 s7, s2, 7")
    e("s_lshr_b32 s8, s2, 3")
    e("s_lshr_b32 s9, s8, 3")
    e("s_lshl_b32 s4, s7, 2")
    e("s_add_u32 s4, s4, s9")
    e("s_and_b32 s5, s8, 7")
    if badmap == 1:
        e("s_lshr_b32 s4, s2, 3")
        e("s_and_b32 s5, s2, 7")
    e("s_lshl_b32 s6, s4, 3")
    e("s_add_u32 s6, s6, s5")
    e("s_mov_b32 s80, 0")
    e(f"s_mov_b32 s67, 0x{f2u(LOG2E):08x}")
    e("v_mov_b32 v18, 0")
    e(f"v_mov_b32 v{VFF}, 0xff")
    e("v_lshrrev_b32 v2, 3, v0")
    e("v_and_b32 v4, 7, v0")
    e("v_lshlrev_b32 v4, 4, v4")
    e("s_cmp_ge_u32 s3, 4")
    e("s_cbranch_scc1 .Lkv")

    e("s_setprio 3")
    XS, XR = 10, 36
    PP = 20
    A = 36
    DAT = 44
    e("v_lshlrev_b32 v1, 4, v0")
    e("v_lshlrev_b32 v9, 2, v0")
    e("s_getreg_b32 s65, hwreg(HW_REG_XCC_ID, 0, 4)")
    e("s_lshl_b32 s66, s65, 8")
    e("s_mov_b32 s82, 0")
    e("s_cmp_eq_u32 s3, 3")
    e("s_cbranch_scc1 .Lffn")

    def xloads():
        srd(SX, 16, None, 1280)
        e(f"buffer_load_dwordx4 v[{XS}:{XS + 3}], v1, s[{SX}:{SX + 3}], 0 offen")
        e(f"buffer_load_dword v{XS + 4}, v9, s[{SX}:{SX + 3}], 0 offen offset:1024")
        e(f"buffer_load_dwordx4 v[{XR}:{XR + 3}], v3, s[{SX}:{SX + 3}], 0 offen")
        e(f"buffer_load_dword v{XR + 4}, v3, s[{SX}:{SX + 3}], 0 offen offset:16")

    def layernorm(nafter):
        e(f"s_waitcnt vmcnt({nafter})")
        for i in range(5):
            e(f"v_lshlrev_b32 v{PP + 2 * i}, 16, v{XS + i}")
            e(f"v_and_b32 v{PP + 2 * i + 1}, 0xffff0000, v{XS + i}")
        e(f"v_add_f32 v5, v{PP}, v{PP + 1}")
        for i in range(2, 10):
            e(f"v_add_f32 v5, v5, v{PP + i}")
        row_sum(5)
        rows4(5, "v_add_f32")
        e(f"v_mul_f32 v5, 0x{f2u(1.0 / 640):08x}, v5")
        e(f"v_sub_f32 v6, v{PP}, v5")
        e("v_mul_f32 v7, v6, v6")
        for i in range(1, 10):
            e(f"v_sub_f32 v6, v{PP + i}, v5")
            e("v_fmac_f32 v7, v6, v6")
        row_sum(7)
        rows4(7, "v_add_f32")
        e(f"v_mul_f32 v7, 0x{f2u(1.0 / 640):08x}, v7")
        bf16r(5, 6)
        bf16r(7, 6)
        e(f"v_add_f32 v7, 0x{f2u(1e-5):08x}, v7")
        bf16r(7, 6)
        e("v_sqrt_f32 v7, v7")
        bf16r(7, 6)
        e("v_rcp_f32 v8, v7")
        for i in range(5):
            a, b = 10, 11
            e(f"v_lshlrev_b32 v{a}, 16, v{XR + i}")
            e(f"v_and_b32 v{b}, 0xffff0000, v{XR + i}")
            e(f"v_sub_f32 v{a}, v{a}, v5")
            e(f"v_sub_f32 v{b}, v{b}, v5")
            e(f"v_cvt_pk_bf16_f32 v6, v{a}, v{b}")
            e(f"v_lshlrev_b32 v{a}, 16, v6")
            e(f"v_and_b32 v{b}, 0xffff0000, v6")
            for (x, dst) in ((a, PP + 2 * i), (b, PP + 2 * i + 1)):
                q, r = 12, 13
                e(f"v_mul_f32 v{q}, v{x}, v8")
                e(f"v_fma_f32 v{r}, -v{q}, v7, v{x}")
                e(f"v_fma_f32 v{q}, v{r}, v8, v{q}")
                e(f"v_cvt_pk_bf16_f32 v{dst}, v{q}, v{q}")

    def buildA(src, dst=None):
        dst = A if dst is None else dst
        for k in range(4):
            e(f"v_perm_b32 v{dst + k}, v{src}, v{src}, v{SEL + k}")

    def combine_halves(D, t0, t1):
        for r in range(4):
            e(f"v_mov_b32_dpp v{t0 + r}, v{D + r} row_ror:8 {DPPM}")
        for r in range(4):
            e(f"v_permlane32_swap_b32 v{t0 + r}, v{t1 + r}")
        for r in range(4):
            e(f"v_add_f32 v{D + r}, v{D + r}, v{t1 + r}")

    def nonce_wait(vF, tg):
        e.label(f".Lfl_{tg}")
        e("s_waitcnt vmcnt(0)")
        e(f"v_readfirstlane_b32 s81, v{vF}")
        e("s_cmp_lg_u32 s81, 0")
        e(f"s_cbranch_scc1 .Lfl_{tg}_ok")
        e("s_sleep 2")
        e(f"buffer_load_dword v{vF}, v18, s[{SDBG}:{SDBG + 3}], 0 offen sc1")
        spin_check(f".Lfl_{tg}")
        e.label(f".Lfl_{tg}_ok")
        e("s_mov_b32 s80, 0")
        nonce_regs()

    e("v_mul_u32_u24 v3, 20, v2")
    e("s_mul_i32 s7, s5, 160")
    e("v_add_u32 v3, s7, v3")
    e("s_mul_i32 s7, s5, 983040")
    e("s_mul_i32 s8, s4, 384")
    e("s_add_u32 s7, s7, s8")
    e("s_lshl_b32 s8, s3, 7")
    e("s_add_u32 s7, s7, s8")
    e("s_mov_b32 s8, 122880")
    e("v_mul_lo_u32 v5, v2, s8")
    e("v_add_u32 v5, v5, v4")
    e("s_waitcnt lgkmcnt(0)")
    xloads()
    srd(SW, 22, "s7", 79 * 12288 + 128)
    e("s_mov_b32 s7, 0")
    for t in range(10):
        e(f"buffer_load_dwordx4 v[{DAT + 4 * t}:{DAT + 4 * t + 3}], v5, s[{SW}:{SW + 3}], s7 offen{POL}")
        if t < 9:
            e("s_add_u32 s7, s7, 12288")
        if t == 1:
            e("s_barrier")
    srd(SWS, 38, None, WS_USED)
    srd(SDBG, 36, None, 256)
    e("s_cmp_lg_u32 s3, 0")
    e("s_cbranch_scc1 .Lnozf")
    for r in range(4):
        e(f"v_mov_b32 v{20 + r}, 0")
    e("s_lshl_b32 s7, s6, 10")
    e(f"s_add_u32 s7, s7, {OP}")
    e(f"buffer_store_dwordx4 v[20:23], v1, {WSR}, s7 offen")
    e.label(".Lnozf")
    selectors(5, 6, 7)
    layernorm(10)
    e(f"buffer_load_dword v19, v18, s[{SDBG}:{SDBG + 3}], 0 offen sc1")
    stamp(1)
    D = 84
    for t in range(10):
        buildA(PP + t)
        e(f"s_waitcnt vmcnt({10 - t})")
        mfma(D, A, DAT + 4 * t, t == 0)
    stamp(2)
    if floor:
        stamps_flush(3)
        e("s_endpgm")
    combine_halves(D, 88, 92)
    e("v_and_b32 v17, 15, v0")
    e("v_lshlrev_b32 v17, 5, v17")
    e("v_lshrrev_b32 v6, 4, v0")
    e("v_lshl_add_u32 v17, v6, 4, v17")
    e("s_lshl_b32 s10, s3, 16")
    e("s_lshl_b32 s7, s6, 8")
    e("s_add_u32 s10, s10, s7")
    e(f"s_add_u32 s11, s10, {BOFF}")
    e("s_lshl_b32 s9, s4, 9")
    e("s_lshl_b32 s7, s3, 7")
    e("s_add_u32 s9, s9, s7")
    e(f"s_add_u32 s9, s9, {QID}")
    e("s_lshl_b32 s7, s5, 4")
    e("s_add_u32 s7, s7, s9")
    e("s_sub_u32 s7, s7, s10")
    e("v_writelane_b32 v17, s7, 8")
    for r in range(4):
        e(f"v_writelane_b32 v{D + r}, s66, 8")
    e("s_lshl_b32 s8, s3, 16")
    e("s_lshl_b32 s7, s4, 11")
    e("s_add_u32 s8, s8, s7")
    e("v_mov_b32 v16, v4")
    nonce_wait(19, "q")
    for r in range(4):
        tag(D + r, D + r, NS[r])
    stamp(3)
    e("s_mov_b64 exec, 0x00ff01ff")
    e(f"buffer_store_dwordx4 v[{D}:{D + 3}], v17, {WSR}, s10 offen")
    e("s_mov_b64 exec, -1")
    def q_storeB():
        e("s_mov_b64 exec, 0x00ff01ff")
        e(f"buffer_store_dwordx4 v[{D}:{D + 3}], v17, {WSR}, s11 offen sc1")
        e("s_mov_b64 exec, -1")
    e("v_mov_b32 v15, v1")
    if qs0:
        e(f"s_sleep {qs0}")
    e.label(".Lqg")
    e(f"buffer_load_dwordx4 v[{DAT}:{DAT + 3}], v15, {WSR}, s8 offen sc1")
    e(f"buffer_load_dwordx4 v[{DAT + 4}:{DAT + 7}], v15, {WSR}, s8 offen offset:1024 sc1")
    e("s_mov_b64 exec, 0xff")
    e(f"buffer_load_dwordx4 v[{DAT + 8}:{DAT + 11}], v16, {WSR}, s9 offen sc1")
    e("s_waitcnt vmcnt(0)")
    tags_ok([(DAT + 8 + k, NS[k]) for k in range(4)], 5, ".Lqg_id")
    e("s_mov_b64 exec, -1")
    e("s_branch .Lqg_re")
    e.label(".Lqg_id")
    e("s_mov_b64 exec, -1")
    tags_ok([(DAT + k, NS[k % 4]) for k in range(8)], 5, ".Lqg_ok")
    e.label(".Lqg_re")
    e(f"s_sleep {qs1}")
    fallback_retry("q", ".Lqg", [15, 16], q_storeB)
    e.label(".Lqg_ok")
    e("s_mov_b64 exec, 0xff")
    xcc_check("q", DAT + 8, 5, q_storeB)
    e("s_mov_b64 exec, -1")
    untag(range(DAT, DAT + 8))
    for r in range(4):
        e(f"v_add_f32 v{DAT + r}, v{DAT + r}, v{DAT + 4 + r}")
    rows_sum4(DAT, DAT + 4)
    e(f"v_cvt_pk_bf16_f32 v6, v{DAT}, v{DAT + 1}")
    e(f"v_cvt_pk_bf16_f32 v7, v{DAT + 2}, v{DAT + 3}")
    e("s_lshl_b32 s7, s3, 7")
    e("v_and_b32 v5, 15, v0")
    e("v_lshlrev_b32 v5, 3, v5")
    e("v_add_u32 v5, s7, v5")
    e(f"ds_write_b64 v5, v[6:7] offset:{QBUF}")
    e("v_mov_b32 v5, s83")
    e(f"ds_write_b32 v18, v5 offset:{QFL + 12}")
    e("s_lshl_b32 s7, s3, 2")
    e("v_mov_b32 v6, s7")
    e("v_mov_b32 v5, s81")
    e("s_waitcnt lgkmcnt(0)")
    e(f"ds_write_b32 v6, v5 offset:{QFL}")
    stamp(4)

    SO_ = 48
    e("s_lshl_b32 s75, s4, 13")
    e("s_lshl_b32 s7, s5, 4")
    e("s_add_u32 s75, s75, s7")
    e(f"s_add_u32 s75, s75, {OP}")
    e("s_add_u32 s75, s75, s83")
    e("s_lshl_b32 s76, s4, 9")
    e("s_add_u32 s76, s76, s7")
    e(f"s_add_u32 s76, s76, {QID + 384}")
    e("s_add_u32 s76, s76, s83")
    e("s_lshl_b32 s7, s3, 6")
    e("v_add_u32 v24, s7, v0")
    e("v_mul_u32_u24 v22, 0x5556, v24")
    e("v_lshrrev_b32 v22, 16, v22")
    e("v_mul_u32_u24 v21, 3, v22")
    e("v_sub_u32 v21, v24, v21")
    e("v_lshlrev_b32 v22, 7, v22")
    e("v_lshl_add_u32 v22, v21, 2, v22")
    e("v_lshlrev_b32 v21, 3, v21")
    e("v_lshrrev_b32 v30, v21, s81")
    e("v_lshlrev_b32 v24, 2, v24")
    e("s_mov_b32 s70, 0")
    e("s_cmp_lg_u32 s3, 0")
    e("s_cbranch_scc1 .Lnoz")
    e("s_and_b32 s74, s6, 31")
    e("s_cmp_ge_u32 s74, 10")
    e("s_cbranch_scc1 .Lnoz")
    e("s_mov_b32 s70, 1")
    e("s_lshr_b32 s7, s6, 5")
    e("s_mul_i32 s8, s7, 160")
    e("s_lshl_b32 s9, s74, 4")
    e("s_add_u32 s8, s8, s9")
    e("v_and_b32 v5, 1, v0")
    e("v_lshlrev_b32 v25, 3, v5")
    e("v_bfe_u32 v6, v0, 4, 1")
    e("v_lshl_add_u32 v25, v6, 2, v25")
    e("v_lshrrev_b32 v6, 5, v0")
    e("v_lshl_add_u32 v25, v6, 1, v25")
    e("v_add_u32 v25, s8, v25")
    e("s_lshl_b32 s9, s8, 6")
    e(f"s_add_u32 s73, s9, {ZP}")
    if ylay:
        e(f"s_add_u32 s71, s9, {YP}")
        e("v_mov_b32 v28, v1")
    else:
        e("v_lshrrev_b32 v28, 1, v0")
        e("v_mul_u32_u24 v28, 3072, v28")
        e("v_lshl_add_u32 v28, v5, 4, v28")
        e("s_mul_i32 s71, s7, 384")
        e("s_lshl_b32 s9, s74, 5")
        e("s_add_u32 s71, s71, s9")
        e(f"s_add_u32 s71, s71, {YP}")
    e("s_mov_b32 s78, 0x00030003")
    e("s_mov_b32 s79, 0x00030003")
    srd(SO_, 34, None, 1280)
    e.label(".Lnoz")
    e("s_cmp_eq_u32 s83, 0")
    e("s_cbranch_scc1 .Lnozb")
    e("s_cmp_lg_u32 s3, 2")
    e("s_cbranch_scc1 .Lnozb")
    for r in range(4):
        e(f"v_mov_b32 v{64 + r}, 0")
    e("v_lshlrev_b32 v12, 7, v0")
    e(f"buffer_store_dwordx4 v[64:67], v12, {WSR}, s75 offen sc1")
    e("s_waitcnt vmcnt(0)")
    e.label(".Lnozb")
    stamp(5)
    e.label(".Lms")
    for i in range(4):
        e(f"ds_read_b128 v[{40 + 4 * i}:{43 + 4 * i}], v18 offset:{MSL + 16 * i}")
    e("s_waitcnt lgkmcnt(0)")
    e("v_max3_u32 v19, v40, v41, v42")
    for i in range(6):
        e(f"v_max3_u32 v19, v19, v{43 + 2 * i}, v{44 + 2 * i}")
    e("v_max_u32 v19, v19, v55")
    e("v_cmp_eq_u32 vcc, -1, v19")
    e("s_cbranch_vccz .Lms_ok")
    e(f"s_sleep {mss}")
    spin_check(".Lms", 10)
    e.label(".Lms_ok")
    e("s_mov_b32 s80, 0")
    MX = 10
    e(f"v_max3_f32 v{MX}, v40, v41, v42")
    e(f"v_max3_f32 v{MX}, v{MX}, v43, v44")
    e(f"v_max3_f32 v{MX}, v{MX}, v45, v46")
    e(f"v_max_f32 v{MX}, v{MX}, v47")
    for i in range(8):
        e(f"v_sub_f32 v{40 + i}, v{40 + i}, v{MX}")
    for i in range(8):
        e(f"v_mul_f32 v{40 + i}, s67, v{40 + i}")
    for i in range(8):
        e(f"v_exp_f32 v{40 + i}, v{40 + i}")
    e("s_cmp_eq_u32 s70, 0")
    e("s_cbranch_scc1 .Lnozl")
    e(f"buffer_load_ushort v26, v25, s[{SX}:{SX + 3}], 0 offen")
    e(f"buffer_load_dwordx4 v[100:103], v1, {WSR}, s73 offen sc1")
    e.label(".Lnozl")
    e("s_cmp_lg_u32 s3, 2")
    e("s_cbranch_scc1 .Lnol")
    e("v_mul_f32 v11, v40, v48")
    for i in range(1, 8):
        e(f"v_fmac_f32 v11, v{40 + i}, v{48 + i}")
    tag(12, 10, NS[2])
    tag(13, 11, NS[3])
    tag(10, 10, NS[0])
    tag(11, 11, NS[1])
    e("s_mov_b64 exec, 1")
    e("s_cmp_lg_u32 s83, 0")
    e("s_cbranch_scc1 .Lml_b")
    e(f"buffer_store_dwordx4 v[10:13], v18, {WSR}, s76 offen")
    e("s_branch .Lml_e")
    e.label(".Lml_b")
    e(f"buffer_store_dwordx4 v[10:13], v18, {WSR}, s76 offen sc1")
    e.label(".Lml_e")
    e("s_mov_b64 exec, -1")
    e.label(".Lnol")
    if ylay:
        e("s_mul_i32 s77, s5, 10240")
        e("s_lshl_b32 s7, s4, 5")
        e("s_add_u32 s77, s77, s7")
        e(f"s_add_u32 s77, s77, {YP}")
        e("v_lshrrev_b32 v23, 1, v0")
        e("v_lshlrev_b32 v23, 10, v23")
        e("v_and_b32 v5, 1, v0")
        e("v_lshl_add_u32 v23, v5, 4, v23")
    else:
        e("s_mul_i32 s77, s6, 384")
        e(f"s_add_u32 s77, s77, {YP}")
        e("v_mov_b32 v23, v1")
    e("s_cmp_lg_u32 s83, 0")
    e("s_waitcnt lgkmcnt(0)")
    e("s_barrier")
    for p in range(8):
        e(f"ds_read2st64_b32 v[{64 + 2 * p}:{65 + 2 * p}], v24 offset0:{OPART // 256 + 6 * p} offset1:{OPART // 256 + 6 * p + 3}")
    for p in range(8):
        e(f"s_waitcnt lgkmcnt({7 - p})")
        e(f"v_add_f32 v{64 + 2 * p}, v{64 + 2 * p}, v{65 + 2 * p}")
        if p < 2:
            e(f"v_mul_f32 v{82 + p}, v{40 + p}, v{64 + 2 * p}")
        else:
            e(f"v_fmac_f32 v{82 + p % 2}, v{40 + p}, v{64 + 2 * p}")
    e("v_add_f32 v80, v82, v83")
    tag(80, 80, "v30")
    e("s_cbranch_scc1 .Lo_b", safe_branch=True)
    e(f"buffer_store_dword v80, v22, {WSR}, s75 offen")
    e.label(".Lo_e")
    stamp(6)
    e("s_cmp_eq_u32 s3, 1")
    e("s_cbranch_scc1 .Lyred")
    e("s_cmp_eq_u32 s70, 0")
    e("s_cbranch_scc1 .Lfin_stamp")
    e("s_waitcnt vmcnt(1)")
    tags_ok([(100 + r, NS[r]) for r in range(4)], 5, ".Lzg_ok")
    e("s_barrier")
    e("s_mov_b32 s70, 2")
    e.label(".Lzg")
    e(f"buffer_load_dwordx4 v[100:103], v1, {WSR}, s73 offen sc1")
    e("s_waitcnt vmcnt(0)")
    tags_ok([(100 + r, NS[r]) for r in range(4)], 5, ".Lzg_ok")
    spin_check(".Lzg")
    e.label(".Lzg_ok")
    e("s_mov_b32 s80, 0")
    untag(range(100, 104))
    col_sum(100)
    bf16r(100, 104)
    e("v_mul_f32 v104, s67, v100")
    e("v_exp_f32 v104, -v104")
    e("v_add_f32 v104, 1.0, v104")
    e("v_rcp_f32 v105, v104")
    e("v_mul_f32 v106, v100, v105")
    e("v_fma_f32 v107, -v106, v104, v100")
    e("v_fma_f32 v107, v107, v105, v106")
    e("v_cmp_o_f32 vcc, v107, v107")
    e("v_cndmask_b32 v100, v106, v107, vcc")
    bf16r(100, 104)
    e("v_lshlrev_b32 v108, 16, v26")
    e("s_cmp_eq_u32 s70, 2")
    e("s_cbranch_scc1 .Lyg")
    e("s_barrier")
    e.label(".Lyg")
    e(f"buffer_load_dwordx4 v[84:87], v28, {WSR}, s71 offen sc1")
    e("s_waitcnt vmcnt(0)")
    tags_ok([(84 + r, NS[r]) for r in range(4)], 5, ".Lyg_ok")
    spin_check(".Lyg")
    e.label(".Lyg_ok")
    untag(range(84, 88))
    col_sum(84)
    bf16r(84, 88)
    e("v_mul_f32 v84, v84, v100")
    bf16r(84, 88)
    e("v_add_f32 v84, v84, v108")
    e("v_cvt_pk_bf16_f32 v88, v84, v84")
    e("s_mov_b64 exec, s[78:79]")
    e(f"buffer_store_short v88, v25, s[{SO_}:{SO_ + 3}], 0 offen")
    if spank:
        e("s_cmp_lg_u32 s2, 0")
        e("s_cbranch_scc1 .Lfin_stamp")
        e("s_memrealtime s[8:9]")
        e("s_waitcnt lgkmcnt(0)")
        e("s_sub_u32 s10, s8, s72")
        e(f"s_mul_i32 s10, s10, {spank}")
        e("s_add_u32 s10, s10, s8")
        e.label(".Lspank")
        e("s_memrealtime s[8:9]")
        e("s_waitcnt lgkmcnt(0)")
        e("s_sub_u32 s11, s8, s10")
        e("s_cmp_lt_i32 s11, 0")
        e("s_cbranch_scc1 .Lspank")
    e.label(".Lfin_stamp")
    stamp(7)
    stamps_flush(8)
    e("s_endpgm")
    e.label(".Lo_b")
    e(f"buffer_store_dword v80, v22, {WSR}, s75 offen sc1")
    e("s_branch .Lo_e")
    e.label(".Lyred")
    e("s_mov_b64 exec, 0xfffff")
    if stamps:
        e("s_waitcnt lgkmcnt(0)")
    e("s_barrier")
    for p in range(8):
        e(f"ds_read_b128 v[{84 + 4 * p}:{87 + 4 * p}], v1 offset:{YPART + 384 * p}")
    for p in range(1, 8, 2):
        e(f"s_waitcnt lgkmcnt({7 - p})")
        for r in range(4):
            e(f"v_add_f32 v{80 + 4 * p + r}, v{80 + 4 * p + r}, v{84 + 4 * p + r}")
        if p == 3 or p == 7:
            for r in range(4):
                e(f"v_add_f32 v{72 + 4 * p + r}, v{72 + 4 * p + r}, v{80 + 4 * p + r}")
    for r in range(4):
        e(f"v_add_f32 v{84 + r}, v{84 + r}, v{100 + r}")
    for r in range(4):
        tag(84 + r, 84 + r, NS[r])
    e(f"buffer_store_dwordx4 v[84:87], v23, {WSR}, s77 offen sc1")
    e("s_branch .Lfin_stamp")

    e.label(".Lffn")
    G0, U0, W0 = DAT, DAT + 40, 120
    e("s_and_b32 s68, s6, 15")
    e("s_lshr_b32 s69, s6, 4")
    e("v_lshrrev_b32 v42, 4, v0")
    e("v_and_b32 v43, 15, v0")
    e("v_mul_u32_u24 v3, 20, v42")
    e("s_mul_i32 s7, s68, 80")
    e("v_add_u32 v3, s7, v3")
    e("s_mul_i32 s7, s68, 122880")
    e("s_mul_i32 s8, s69, 192")
    e("s_add_u32 s7, s7, s8")
    e("v_mul_u32_u24 v5, 30720, v42")
    e("v_lshl_add_u32 v5, v43, 4, v5")
    e("v_cmp_gt_u32 vcc, 12, v43")
    e("v_mov_b32 v6, 0x7ffffff0")
    e("v_cndmask_b32 v5, v6, v5, vcc")
    e("s_waitcnt lgkmcnt(0)")
    xloads()
    srd(SW, 28, "s7", 39 * 3072 + 192)
    srd(SU, 30, "s7", 39 * 3072 + 192)
    e("s_mov_b32 s7, 0")
    for t in range(10):
        e(f"buffer_load_dwordx4 v[{G0 + 4 * t}:{G0 + 4 * t + 3}], v5, s[{SW}:{SW + 3}], s7 offen{POL}")
        e(f"buffer_load_dwordx4 v[{U0 + 4 * t}:{U0 + 4 * t + 3}], v5, s[{SU}:{SU + 3}], s7 offen{POL}")
        if t < 9:
            e("s_add_u32 s7, s7, 3072")
        if t == 0:
            e("s_barrier")
    srd(SWS, 38, None, WS_USED)
    srd(SDBG, 36, None, 256)
    selectors(5, 7, 8)
    layernorm(20)
    e(f"buffer_load_dword v19, v18, s[{SDBG}:{SDBG + 3}], 0 offen sc1")
    stamp(1)
    DG, DU = 10, 14
    for t in range(10):
        buildA(PP + t)
        e(f"s_waitcnt vmcnt({21 - 2 * t - 1})")
        mfma(DG, A, G0 + 4 * t, t == 0)
        e(f"s_waitcnt vmcnt({21 - 2 * t - 2})")
        mfma(DU, A, U0 + 4 * t, t == 0)
    stamp(2)
    e("v_lshlrev_b32 v40, 6, v43")
    e("v_and_b32 v6, 1, v42")
    e("v_lshl_add_u32 v40, v6, 5, v40")
    e("v_lshrrev_b32 v6, 1, v42")
    e("v_lshl_add_u32 v40, v6, 4, v40")
    e("s_mul_i32 s10, s6, 768")
    e(f"s_add_u32 s10, s10, {GU - GID}")
    e("v_add_u32 v40, s10, v40")
    e("s_lshl_b32 s7, s6, 4")
    e("v_writelane_b32 v40, s7, 12")
    e(f"s_mov_b32 s10, {GID}")
    e(f"s_mov_b32 s11, {GID + BOFF}")
    e("s_mov_b32 s78, 0")
    e("s_mov_b32 s79, -1")
    e(f"v_cndmask_b32 v60, v{DG}, v{DG + 2}, s[78:79]")
    e(f"v_cndmask_b32 v61, v{DU}, v{DU + 2}, s[78:79]")
    e(f"v_cndmask_b32 v62, v{DG + 1}, v{DG + 3}, s[78:79]")
    e(f"v_cndmask_b32 v63, v{DU + 1}, v{DU + 3}, s[78:79]")
    for r in range(4):
        e(f"v_writelane_b32 v{60 + r}, s66, 12")
    e("s_mov_b32 s78, 0x0fff1fff")
    e("s_mov_b32 s79, 0x0fff0fff")
    if floor:
        e("s_branch .Lffn_down")
    nonce_wait(19, "f")
    for r in range(4):
        tag(60 + r, 60 + r, NS[r])
    stamp(3)
    def f_store(so, pol):
        e("s_mov_b64 exec, s[78:79]")
        e(f"buffer_store_dwordx4 v[60:63], v40, {WSR}, {so} offen{pol}")
        e("s_mov_b64 exec, -1")
    f_store("s10", "")
    def f_storeB():
        f_store("s11", " sc1")
    e.label(".Lffn_down")
    e("s_mul_i32 s7, s4, 61440")
    e("s_mul_i32 s8, s5, 160")
    e("s_add_u32 s7, s7, s8")
    srd(SD, 32, "s7", 47 * 1280 + 160)
    e("v_mul_u32_u24 v5, 15360, v42")
    e("v_lshl_add_u32 v5, v43, 4, v5")
    e("v_cmp_gt_u32 vcc, 10, v43")
    e("v_mov_b32 v6, 0x7ffffff0")
    e("v_cndmask_b32 v5, v6, v5, vcc")
    e("s_mov_b32 s7, 0")
    for qq in range(12):
        e(f"buffer_load_dwordx4 v[{W0 + 4 * qq}:{W0 + 4 * qq + 3}], v5, s[{SD}:{SD + 3}], s7 offen{POL}")
        if qq < 11:
            e("s_add_u32 s7, s7, 1280")
    if floor:
        e("s_waitcnt vmcnt(0)")
        stamp(4)
        stamps_flush(5)
        e("s_endpgm")
    e("s_mul_i32 s8, s69, 12288")
    e("s_and_b32 s7, s4, 1")
    e("s_mul_i32 s7, s7, 384")
    e("s_add_u32 s8, s8, s7")
    e(f"s_add_u32 s8, s8, {GU}")
    for i in range(1, 4):
        e(f"s_add_u32 s{72 + i}, s8, {3072 * i}")
    e("s_lshl_b32 s9, s69, 8")
    e(f"s_add_u32 s9, s9, {GID}")
    e("v_and_b32 v9, 31, v0")
    e("v_min_u32 v9, 23, v9")
    e("v_lshrrev_b32 v6, 5, v0")
    e("v_mul_u32_u24 v5, 768, v6")
    e("v_lshl_add_u32 v5, v9, 4, v5")
    e("v_lshlrev_b32 v41, 4, v43")
    if gs0:
        e(f"s_sleep {gs0}")
    e.label(".Lgg")
    for i in range(8):
        so = "s8" if i < 2 else f"s{72 + i // 2}"
        e(f"buffer_load_dwordx4 v[{68 + 4 * i}:{71 + 4 * i}], v5, {WSR}, {so} offen offset:{(i % 2) * 1536} sc1")
    e("s_mov_b64 exec, 0xffff")
    e(f"buffer_load_dwordx4 v[100:103], v41, {WSR}, s9 offen sc1")
    e("s_waitcnt vmcnt(0)")
    tags_ok([(100 + k, NS[k]) for k in range(4)], 6, ".Lgg_id")
    e("s_mov_b64 exec, -1")
    e("s_branch .Lgg_re")
    e.label(".Lgg_id")
    e("s_mov_b64 exec, -1")
    tags_ok([(68 + k, NS[k % 4]) for k in range(32)], 6, ".Lgg_ok")
    e.label(".Lgg_re")
    e(f"s_sleep {qs1}")
    fallback_retry("f", ".Lgg", [5, 41], f_storeB)
    e.label(".Lgg_ok")
    e("s_mov_b64 exec, 0xffff")
    xcc_check("f", 100, 6, f_storeB)
    e("s_mov_b64 exec, -1")
    untag(range(68, 100))
    for i in range(1, 8):
        for r in range(4):
            e(f"v_add_f32 v{68 + r}, v{68 + r}, v{68 + 4 * i + r}")
    for r in range(4):
        e(f"v_mov_b32 v{72 + r}, v{68 + r}")
    for r in range(4):
        e(f"v_permlane32_swap_b32 v{68 + r}, v{72 + r}")
    for r in range(4):
        e(f"v_add_f32 v{68 + r}, v{68 + r}, v{72 + r}")
    round4(68, 72)
    e("v_mul_f32 v68, v68, v69")
    e("v_mul_f32 v70, v70, v71")
    e("v_cvt_pk_bf16_f32 v6, v68, v70")
    e("v_lshlrev_b32 v5, 2, v9")
    e(f"ds_write_b32 v5, v6 offset:{HBUF}")
    e("v_mul_u32_u24 v5, 24, v42")
    e("s_waitcnt lgkmcnt(0)")
    for i in range(3):
        e(f"ds_read_b64 v[{70 + 2 * i}:{71 + 2 * i}], v5 offset:{HBUF + 8 * i}")
    e("s_waitcnt lgkmcnt(0)")
    DZ = 10
    for qq in range(12):
        src = 70 + qq // 2
        if qq % 2 == 0:
            e(f"v_and_b32 v6, 0xffff, v{src}")
        else:
            e(f"v_lshrrev_b32 v6, 16, v{src}")
        buildA(6)
        mfma(DZ, A, W0 + 4 * qq, qq == 0)
    e("v_lshlrev_b32 v5, 10, v43")
    e("v_lshl_add_u32 v5, v42, 4, v5")
    e("s_mul_i32 s8, s5, 10240")
    e("s_lshl_b32 s7, s4, 5")
    e("s_add_u32 s8, s8, s7")
    e(f"s_add_u32 s8, s8, {ZP}")
    for r in range(4):
        tag(DZ + r, DZ + r, NS[r])
    e("s_mov_b64 exec, 0x03ff03ff")
    e(f"buffer_store_dwordx4 v[{DZ}:{DZ + 3}], v5, {WSR}, s8 offen sc1")
    stamp(4)
    stamps_flush(5)
    e("s_endpgm")

    e.label(".Lkv")
    SK, SV, SO = 40, 44, 48
    K0, V0, WO, S0 = 40, 88, 136, 8
    QR = [160, 164, 20]
    e("s_sub_u32 s64, s3, 4")
    e("v_mul_u32_u24 v3, 384, v2")
    e("v_add_u32 v3, v3, v4")
    e("s_mul_i32 s7, s4, 3145728")
    e("s_mul_i32 s8, s5, 98304")
    e("s_add_u32 s7, s7, s8")
    e("s_mul_i32 s8, s64, 12288")
    e("s_add_u32 s7, s7, s8")
    e(f"s_add_u32 s7, s7, {6144 * 384}")
    ra, rb, rc, rd = [int(ch) for ch in str(rot)[1:]]
    e(f"s_mul_i32 s8, s64, {ra}")
    if rb:
        e(f"s_mul_i32 s9, s5, {rb}")
        e("s_add_u32 s8, s8, s9")
    if rc:
        e(f"s_mul_i32 s9, s4, {rc}")
        e("s_add_u32 s8, s8, s9")
    if rd:
        e("s_lshr_b32 s9, s4, 2")
        e(f"s_mul_i32 s9, s9, {rd}")
        e("s_add_u32 s8, s8, s9")
    for t in range(4):
        e(f"s_add_u32 s9, s8, {t}")
        e("s_and_b32 s9, s9, 3")
        e(f"s_mul_i32 s{74 + t}, s9, 3072")
    e("s_cmp_lg_u32 s3, 11")
    e("s_cbranch_scc1 .Lnoinit")
    e("v_min_u32 v5, 19, v0")
    e("v_lshlrev_b32 v5, 2, v5")
    e("v_mov_b32 v6, -1")
    e(f"ds_write_b32 v5, v6 offset:{MSL}")
    e("s_cmp_lg_u32 s2, 0")
    e("s_cbranch_scc1 .Lnoinit")
    e("s_waitcnt lgkmcnt(0)")
    srd(SDBG, 36, None, 256)
    e("s_bfe_u32 s10, s72, 0x70004")
    e("s_bfe_u32 s8, s72, 0x7000b")
    e("s_lshl_b32 s8, s8, 8")
    e("s_or_b32 s10, s10, s8")
    e("s_bfe_u32 s8, s72, 0x70012")
    e("s_lshl_b32 s8, s8, 16")
    e("s_or_b32 s10, s10, s8")
    e("s_bfe_u32 s8, s72, 0x60019")
    e("s_lshl_b32 s8, s8, 24")
    e("s_or_b32 s10, s10, s8")
    e("s_or_b32 s10, s10, 0x80808080")
    e("v_mov_b32 v6, s10")
    e("s_mov_b64 exec, 1")
    e(f"buffer_store_dword v6, v18, s[{SDBG}:{SDBG + 3}], 0 offen sc1")
    e("s_mov_b64 exec, -1")
    e.label(".Lnoinit")
    e("s_waitcnt lgkmcnt(0)")
    srd(SK, 18, "s7", 12288)

    def side_work(n):
        if n == TH:
            e("s_barrier")
            srd(SV, 20, "s7", 12288)
            srd(SWS, 38, None, WS_USED)
            e("v_and_b32 v1, 15, v0")
            e("v_lshrrev_b32 v2, 4, v0")
            e("v_mul_u32_u24 v6, 7680, v2")
            e("v_lshl_add_u32 v6, v1, 4, v6")
            e("v_cmp_gt_u32 vcc, 10, v1")
            e("v_mov_b32 v7, 0x7ffffff0")
            e("v_cndmask_b32 v6, v7, v6, vcc")
            e("s_mul_i32 s7, s4, 245760")
            e("s_mul_i32 s8, s64, 30720")
            e("s_add_u32 s7, s7, s8")
            e("s_mul_i32 s8, s5, 160")
            e("s_add_u32 s7, s7, s8")
            srd(SO, 24, "s7", 23 * 1280 + 160)
            e("s_movk_i32 s66, 3840")
            selectors(7, 8, 9)
            e("v_lshrrev_b32 v16, 5, v0")
            e("v_mul_u32_u24 v16, 768, v16")
            e("v_lshl_add_u32 v16, v4, 1, v16")
            e("v_and_b32 v13, 1, v2")
            e("v_lshl_add_u32 v16, v13, 4, v16")
            e("s_mul_i32 s7, s64, 1536")
            e("v_add_u32 v16, s7, v16")
            e("s_lshl_b32 s7, s64, 2")
            e("v_mov_b32 v17, s7")
            e("v_lshlrev_b32 v14, 4, v0")
            e("s_lshl_b32 s69, s4, 13")
            e("s_lshl_b32 s7, s64, 10")
            e("s_add_u32 s69, s69, s7")
            e(f"s_add_u32 s69, s69, {OP}")
            e("s_lshl_b32 s68, s4, 9")
            e(f"s_add_u32 s68, s68, {QID + 384}")
            e("v_lshlrev_b32 v19, 5, v1")
            e("v_lshl_add_u32 v19, v2, 4, v19")
            e("s_mul_i32 s7, s64, 384")
            e("v_add_u32 v19, s7, v19")
            e("s_mov_b32 s78, 0x00ff00ff")
            e("s_mov_b32 s79, 0xff00ff00")
            e(f"s_mov_b32 s70, 0x{f2u(192.0 ** -0.5):08x}")
            e("s_cmp_ge_u32 s64, 4")
    seq = []
    for t in range(4):
        for r3 in range(3):
            seq.append(("k", t, r3))
    for qq in range(6 - wo_late):
        seq.append(("w", qq, 0))
    for t in range(4):
        for r3 in range(3):
            seq.append(("v", t, r3))
    nthr = len(seq)
    def wo_load(a):
        r = WO + 4 * a
        e(f"buffer_load_dwordx4 v[{r}:{r + 3}], v6, s[{SO}:{SO + 3}], {'s66' if a >= 3 else '0'} offen offset:{1280 * (a % 3)}{POL}")
    if wo_pos == 0 or floor:
        for qq in range(6 - wo_late, 6):
            seq.append(("w", qq, 0))
    for n, (kind, a, b) in enumerate(seq):
        side_work(n)
        if yb0 <= n < yb1:
            lab = e.newlabel("Lk")
            e(f"s_waitcnt vmcnt({TH})")
            e(f"s_cbranch_scc1 {lab}")
            e(f"s_waitcnt vmcnt({TH - 1})")
            e.label(lab)
        elif TH <= n < nthr:
            e(f"s_waitcnt vmcnt({TH - 1})")
        if kind == "w":
            r = WO + 4 * a
            e(f"buffer_load_dwordx4 v[{r}:{r + 3}], v6, s[{SO}:{SO + 3}], {'s66' if a >= 3 else '0'} offen offset:{1280 * (a % 3)}{POL}")
        else:
            S, R0 = (SK, K0) if kind == "k" else (SV, V0)
            r = R0 + 12 * a + 4 * b
            e(f"buffer_load_dwordx4 v[{r}:{r + 3}], v3, s[{S}:{S + 3}], s{74 + a} offen offset:{128 * b}{POL}")
    if floor:
        stamp(1)
        e(f"s_waitcnt vmcnt({wo_late})")
        stamp(5)
        e("s_waitcnt vmcnt(0)")
        stamp(6)
        stamps_flush(7)
        e("s_endpgm")
    stamp(1)
    e.label(".Lqs")
    e(f"ds_read_b128 v[36:39], v18 offset:{QFL}")
    for r3 in range(3):
        e(f"ds_read_b128 v[{QR[r3]}:{QR[r3] + 3}], v4 offset:{QBUF + 128 * r3}")
    e("s_waitcnt lgkmcnt(0)")
    e("v_max3_u32 v13, v36, v37, v38")
    e("v_cmp_eq_u32 vcc, -1, v13")
    e("s_cbranch_vccz .Lqs_ok")
    e("s_sleep 2")
    spin_check(".Lqs", 10)
    e.label(".Lqs_ok")
    e("s_mov_b32 s80, 0")
    e("v_readfirstlane_b32 s81, v36")
    e("v_add_u32 v14, v14, v39")
    e("v_add_u32 v15, v4, v39")
    stamp(2)
    for i in range(12):
        for t in range(4):
            q = QR[i // 4] + i % 4
            if i == 0:
                e(f"v_dot2_f32_bf16 v{S0 + t}, v{K0 + 12 * t + i}, v{q}, 0")
            else:
                e(f"v_dot2_f32_bf16 v{S0 + t}, v{K0 + 12 * t + i}, v{q}, v{S0 + t}")
    nonce_regs()
    for pat in P8:
        for t in range(4):
            e(f"v_add_f32_dpp v{S0 + t}, v{S0 + t}, v{S0 + t} {pat} {DPPM}")
    stamp(3)
    if wo_pos == 1:
        for qq in range(6 - wo_late, 6):
            wo_load(qq)
    round4(S0, 36)
    for t in range(4):
        e(f"v_mul_f32 v{S0 + t}, s70, v{S0 + t}")
    round4(S0, 36)
    MX = 12
    e(f"v_max3_f32 v{MX}, v{S0}, v{S0 + 1}, v{S0 + 2}")
    e(f"v_max_f32 v{MX}, v{MX}, v{S0 + 3}")
    e(f"v_max_f32_dpp v{MX}, v{MX}, v{MX} row_ror:8 {DPPM}")
    rows4(MX, "v_max_f32")
    e(f"v_min_u32 v13, -2, v{MX}")
    e(f"ds_write_b32 v17, v13 offset:{MSL}")
    for t in range(4):
        e(f"v_sub_f32 v{S0 + t}, v{S0 + t}, v{MX}")
    for t in range(4):
        e(f"v_mul_f32 v{S0 + t}, s67, v{S0 + t}")
    for t in range(4):
        e(f"v_exp_f32 v{S0 + t}, v{S0 + t}")
    e(f"v_add_f32 v13, v{S0}, v{S0 + 1}")
    e(f"v_add_f32 v13, v13, v{S0 + 2}")
    e(f"v_add_f32 v13, v13, v{S0 + 3}")
    AP = 40
    for t in range(4):
        e(f"v_cvt_pk_bf16_f32 v{36 + t}, v{S0 + t}, v{S0 + t}")
    e(f"v_add_f32_dpp v13, v13, v13 row_ror:8 {DPPM}")
    rows4(13, "v_add_f32")
    e(f"v_min_u32 v13, -2, v13")
    e(f"ds_write_b32 v17, v13 offset:{LSL}")
    for t in range(4):
        buildA(36 + t, AP + 4 * t)
    stamp(4)
    if wo_pos == 2:
        for qq in range(6 - wo_late, 6):
            wo_load(qq)
    O = 56
    for t in range(4):
        for r3 in range(3):
            idx = 3 * t + r3
            if 11 - idx < TH:
                e(f"s_waitcnt vmcnt({11 + wo_late - idx})")
            mfma(O + 4 * r3, AP + 4 * t, V0 + 4 * idx, t == 0)
    e("s_mov_b64 exec, s[78:79]")
    for r3 in range(3):
        e(f"ds_write_b128 v16, v[{O + 4 * r3}:{O + 4 * r3 + 3}] offset:{OPART + 256 * r3}")
    e("s_mov_b64 exec, -1")
    stamp(5)
    e("s_waitcnt lgkmcnt(0)")
    e("s_barrier")
    e.label(".Lml")
    e(f"buffer_load_dwordx4 v[68:71], v15, {WSR}, s68 offen sc1")
    e(f"buffer_load_dwordx3 v[64:66], v14, {WSR}, s69 offen sc1")
    e("s_waitcnt vmcnt(1)")
    tags_ok([(68 + k, NS[k]) for k in range(4)], 72, ".Lml_ok")
    spin_check(".Lml")
    e.label(".Lml_ok")
    untag([68, 69])
    e("v_mov_b32 v70, v68")
    for pat in P8:
        e(f"v_max_f32_dpp v70, v70, v70 {pat} {DPPM}")
    e("v_sub_f32 v70, v68, v70")
    e("v_mul_f32 v70, s67, v70")
    e("v_exp_f32 v70, v70")
    e("v_mul_f32 v71, v70, v69")
    for pat in P8:
        e(f"v_add_f32_dpp v71, v71, v71 {pat} {DPPM}")
    e("v_rcp_f32 v71, v71")
    e("v_mul_f32 v71, v71, v70")
    e("s_branch .Log_chk")
    e.label(".Log")
    e(f"buffer_load_dwordx3 v[64:66], v14, {WSR}, s69 offen sc1")
    e.label(".Log_chk")
    e("s_waitcnt vmcnt(0)")
    tags_ok([(64 + k, NS[k]) for k in range(3)], 72, ".Log_ok")
    spin_check(".Log")
    e.label(".Log_ok")
    stamp(6)
    untag([64, 65, 66])
    for r in range(3):
        e(f"v_mul_f32 v{64 + r}, v71, v{64 + r}")
    for pat in P8:
        for r in range(3):
            e(f"v_add_f32_dpp v{64 + r}, v{64 + r}, v{64 + r} {pat} {DPPM}")
    for r in range(3):
        e(f"v_cvt_pk_bf16_f32 v{64 + r}, v{64 + r}, 0")
    Y = 72
    buildA(64, 88)
    for r in range(3):
        e(f"v_mov_b32_dpp v{68 + r}, v{64 + r} row_ror:8 {DPPM}")
    src = [64, 65, 66, 68, 69, 70]
    for qq in range(6):
        if qq < 5:
            buildA(src[qq + 1], 92 + 4 * qq)
        mfma(Y, 88 + 4 * qq, WO + 4 * qq, qq == 0)
    e("s_mov_b64 exec, 0x03ff03ff")
    e(f"ds_write_b128 v19, v[{Y}:{Y + 3}] offset:{YPART}")
    e("s_waitcnt lgkmcnt(0)")
    e("s_barrier")
    stamp(7)
    stamps_flush(8)
    e.label(".Lend")
    e("s_endpgm")

    e.raw('.section .rodata,"a"')
    e.raw(".p2align 6")
    e.raw(f".amdhsa_kernel {NAME}_kernel")
    e.raw("  .amdhsa_next_free_vgpr 168")
    e.raw("  .amdhsa_next_free_sgpr 102")
    e.raw("  .amdhsa_accum_offset 168")
    e.raw("  .amdhsa_group_segment_fixed_size 0")
    e.raw("  .amdhsa_kernarg_size 96")
    e.raw("  .amdhsa_user_sgpr_count 2")
    e.raw("  .amdhsa_user_sgpr_kernarg_segment_ptr 1")
    e.raw("  .amdhsa_system_sgpr_workgroup_id_x 1")
    e.raw("  .amdhsa_float_denorm_mode_32 3")
    e.raw(".end_amdhsa_kernel")
    return e.text()


if __name__ == "__main__":
    import argparse, inspect
    ap = argparse.ArgumentParser()
    ap.add_argument("-o", default=f"cdna_kernels/{NAME}.s")
    sig = inspect.signature(gen)
    for nm, p in sig.parameters.items():
        if isinstance(p.default, bool):
            ap.add_argument("--" + nm, action="store_true")
        else:
            ap.add_argument("--" + nm, type=int, default=p.default)
    a = vars(ap.parse_args())
    o = a.pop("o")
    open(o, "w").write(gen(**a))
    print("wrote", o)
```

```python
import sys, struct
from asmlib import Emitter

NAME = "recurrent_scan__sliding_block_cached__glu_gated_bilinear__decode"

def f2u(f):
    return struct.unpack("<I", struct.pack("<f", f))[0]

QP = 0x0
QID = 0x30000
GID = 0x38000
GU = 0x40000
OP = 0x80000
BOFF = 0x100000
ZP = 0x200000
YP = 0x220000
WS_USED = 0x240000
STAMP = 0x300000
QBUF = 0
MSL = 384
LSL = 416
QFL = 448
VCN = 464
HBUF = 480
OPART = 1024
YPART = OPART + 16 * 768
LDS_BYTES = YPART + 8 * 384

SPIN_MAX = 200000
FALLBACK = 64
LOG2E = 1.4426950408889634


def gen(stamps=False, TH=3, floor=False, wo_late=6, badmap=0, qs0=40, qs1=16, gs0=60, mss=2, zs=16, rot=10100, spank=0, yb0=0, yb1=0, wo_pos=1, ylay=0, touch=0, nearly=1, kvpre=1, hpre=6, mlwarm=0, nqk=17, wo_wait=2, wo_mode=0, TW=5, osl=0, msl=0, ysl=0, vrv=0, od=6, mlp=4, xb=0, xb0=6):
    e = Emitter()
    POL = " nt"
    hdr = open("cdna_kernels/%s.s.ref" % NAME).read().split("; Override launch")[0]
    e.raw(hdr.rstrip("\n"))
    e.raw(f"; @launch grid=(256,1,1) block=(768,1,1) lds={LDS_BYTES}")
    e.raw('.amdgcn_target "amdgcn-amd-amdhsa--gfx950"')
    e.raw(".text")
    e.raw(f".globl {NAME}_kernel")
    e.raw(".p2align 8")
    e.raw(f".type {NAME}_kernel,@function")
    e.raw(f"{NAME}_kernel:")

    def stamp(i):
        if stamps:
            e(f"s_memrealtime s[{84 + 2 * i}:{85 + 2 * i}]")

    def stamps_flush(n):
        if not stamps:
            return
        e("s_waitcnt lgkmcnt(0)")
        e("s_mul_i32 s7, s6, 12")
        e("s_add_u32 s7, s7, s3")
        e("s_lshl_b32 s7, s7, 6")
        e(f"s_add_u32 s7, s7, {STAMP}")
        e("s_add_u32 s8, s38, s7")
        e("s_addc_u32 s9, s39, 0")
        e("s_mov_b32 s10, 64")
        e("s_mov_b32 s11, 0x20000")
        e("s_mov_b64 exec, 1")
        e("v_mov_b32 v1, 0")
        for i in range(n):
            e(f"v_mov_b32 v2, s{84 + 2 * i}")
            e(f"buffer_store_dword v2, v1, s[8:11], 0 offen offset:{4 * i}")
        e("s_waitcnt vmcnt(0)")

    def srd(d, blo, off, nbytes):
        if off is None:
            e(f"s_mov_b32 s{d}, s{blo}")
            e(f"s_mov_b32 s{d + 1}, s{blo + 1}")
        else:
            e(f"s_add_u32 s{d}, s{blo}, {off}")
            e(f"s_addc_u32 s{d + 1}, s{blo + 1}, 0")
        e(f"s_mov_b32 s{d + 2}, {nbytes}")
        e(f"s_mov_b32 s{d + 3}, 0x20000")

    def spin_check(lbl_retry, mult=1):
        e("s_add_u32 s80, s80, 1")
        e(f"s_cmp_lt_u32 s80, {SPIN_MAX * mult}")
        e(f"s_cbranch_scc1 {lbl_retry}")
        e("s_branch .Lend")

    def fallback_retry(tg, lbl_retry, vaddrs, storeB):
        e("s_add_u32 s80, s80, 1")
        e(f"s_cmp_lt_u32 s80, {FALLBACK}")
        e(f"s_cbranch_scc1 {lbl_retry}")
        e("s_cmp_lg_u32 s82, 0")
        e(f"s_cbranch_scc1 .Lfb_{tg}")
        storeB()
        e("s_mov_b32 s82, 1")
        e.label(f".Lfb_{tg}")
        for v in vaddrs:
            e(f"v_xor_b32 v{v}, 0x{BOFF:x}, v{v}")
        e(f"s_cmp_lt_u32 s80, {SPIN_MAX}")
        e(f"s_cbranch_scc1 {lbl_retry}")
        e("s_branch .Lend")

    def xcc_check(tg, vid, tmp, storeB):
        e("s_mov_b32 s80, 0")
        e("s_mov_b32 s83, 0")
        e(f"v_lshrrev_b32 v{tmp}, 8, v{vid}")
        e(f"v_cmp_ne_u32 vcc, s65, v{tmp}")
        e(f"s_cbranch_vccz .Lxc_{tg}")
        e(f"s_mov_b32 s83, 0x{BOFF:x}")
        e("s_cmp_lg_u32 s82, 0")
        e(f"s_cbranch_scc1 .Lxc_{tg}")
        storeB()
        e.label(f".Lxc_{tg}")

    NS = ["s81", "s61", "s62", "s63"]
    VFF = 31

    def nonce_regs():
        for k in range(1, 4):
            e(f"s_lshr_b32 {NS[k]}, s81, {8 * k}")

    def tag(dst, src, n):
        e(f"v_bfi_b32 v{dst}, v{VFF}, {n}, v{src}")

    def tags_ok(pairs, acc, ok_label):
        for i, (w, n) in enumerate(pairs):
            if i == 0:
                e(f"v_xor_b32 v{acc}, {n}, v{w}")
            else:
                e(f"v_bitop3_b32 v{acc}, v{acc}, v{w}, {n} bitop3:0xf6")
        e(f"v_and_b32 v{acc}, v{VFF}, v{acc}")
        e(f"v_cmp_ne_u32 vcc, 0, v{acc}")
        e(f"s_cbranch_vccz {ok_label}", safe_branch=True)

    def untag(regs):
        for r in regs:
            e(f"v_and_b32 v{r}, 0xffffff00, v{r}")

    SEL = 32

    def selectors(t0, t1, t2):
        e(f"v_bfe_u32 v{t0}, v0, 3, 1")
        e(f"v_mul_u32_u24 v{t0}, 0x202, v{t0}")
        e(f"v_add_u32 v{t0}, 0x100, v{t0}")
        e(f"v_and_b32 v{t1}, 1, v0")
        e(f"v_lshlrev_b32 v{t1}, 4, v{t1}")
        e(f"v_lshlrev_b32 v{t0}, v{t1}, v{t0}")
        e(f"v_mov_b32 v{t2}, 0x0c0c0000")
        e(f"v_lshrrev_b32 v{t2}, v{t1}, v{t2}")
        e(f"v_or_b32 v{t0}, v{t0}, v{t2}")
        e(f"v_bfe_u32 v{t1}, v0, 1, 2")
        e(f"v_mov_b32 v{t2}, 0x0c0c0c0c")
        for k in range(4):
            e(f"v_cmp_eq_u32 vcc, {k}, v{t1}")
            e(f"v_cndmask_b32 v{SEL + k}, v{t2}, v{t0}, vcc")

    DPPM = "row_mask:0xf bank_mask:0xf"
    P8 = ("quad_perm:[1,0,3,2]", "quad_perm:[2,3,0,1]", "row_half_mirror")
    P16 = P8 + ("row_mirror",)

    def row_sum(v):
        for pat in P16:
            e(f"v_add_f32_dpp v{v}, v{v}, v{v} {pat} {DPPM}")

    def rows4(v, op):
        for i in range(4):
            e(f"v_readlane_b32 s{12 + i}, v{v}, {16 * i}")
        e(f"v_mov_b32 v{v}, s12")
        for i in range(1, 4):
            e(f"{op} v{v}, s{12 + i}, v{v}")

    def bf16r(v, t):
        e(f"v_cvt_pk_bf16_f32 v{t}, v{v}, v{v}")
        e(f"v_lshlrev_b32 v{v}, 16, v{t}")

    def mfma(d, a, b, first):
        e(f"v_mfma_f32_16x16x32_bf16 v[{d}:{d + 3}], v[{a}:{a + 3}], v[{b}:{b + 3}], "
          + ("0" if first else f"v[{d}:{d + 3}]"))

    def rows_sum4(b, t):
        for sw in ("v_permlane16_swap_b32", "v_permlane32_swap_b32"):
            for r in range(4):
                e(f"v_mov_b32 v{t + r}, v{b + r}")
            for r in range(4):
                e(f"{sw} v{b + r}, v{t + r}")
            for r in range(4):
                e(f"v_add_f32 v{b + r}, v{b + r}, v{t + r}")

    def col_sum(b):
        e(f"v_permlane32_swap_b32 v{b}, v{b + 1}")
        e(f"v_permlane32_swap_b32 v{b + 2}, v{b + 3}")
        e(f"v_add_f32 v{b}, v{b}, v{b + 1}")
        e(f"v_add_f32 v{b + 2}, v{b + 2}, v{b + 3}")
        e(f"v_permlane16_swap_b32 v{b}, v{b + 2}")
        e(f"v_add_f32 v{b}, v{b}, v{b + 2}")
        for pat in ("row_ror:2", "row_ror:4", "row_ror:8"):
            e(f"v_add_f32_dpp v{b}, v{b}, v{b} {pat} {DPPM}")

    def round4(b, t):
        e(f"v_cvt_pk_bf16_f32 v{t}, v{b}, v{b + 1}")
        e(f"v_cvt_pk_bf16_f32 v{t + 1}, v{b + 2}, v{b + 3}")
        e(f"v_lshlrev_b32 v{b}, 16, v{t}")
        e(f"v_and_b32 v{b + 1}, 0xffff0000, v{t}")
        e(f"v_lshlrev_b32 v{b + 2}, 16, v{t + 1}")
        e(f"v_and_b32 v{b + 3}, 0xffff0000, v{t + 1}")

    SX, SW, SU, SD, SWS, SDBG = 40, 44, 48, 52, 56, 60
    WSR = f"s[{SWS}:{SWS + 3}]"
    e("s_cmp_ge_u32 s2, 256")
    e("s_cbranch_scc1 .Lend")
    e("s_load_dwordx16 s[16:31], s[0:1], 0")
    e("s_load_dwordx8 s[32:39], s[0:1], 64")
    e("s_memrealtime s[72:73]")
    if stamps:
        for i in range(1, 8):
            e(f"s_mov_b32 s{84 + 2 * i}, 0")
    stamp(0)
    e("v_lshrrev_b32 v1, 6, v0")
    e("v_and_b32 v0, 63, v0")
    e("v_readfirstlane_b32 s3, v1")
    if badmap == 2:
        e("s_lshr_b32 s7, s2, 7")
        e("s_xor_b32 s2, s2, s7")
        e("s_lshr_b32 s7, s2, 3")
        e("s_and_b32 s7, s7, 1")
        e("s_xor_b32 s2, s2, s7")
    if badmap == 3:
        e("s_lshr_b32 s7, s2, 6")
        e("s_and_b32 s7, s7, 1")
        e("s_xor_b32 s2, s2, s7")
    e("s_and_b32 s7, s2, 7")
    e("s_lshr_b32 s8, s2, 3")
    e("s_lshr_b32 s9, s8, 3")
    e("s_lshl_b32 s4, s7, 2")
    e("s_add_u32 s4, s4, s9")
    e("s_and_b32 s5, s8, 7")
    if badmap == 1:
        e("s_lshr_b32 s4, s2, 3")
        e("s_and_b32 s5, s2, 7")
    e("s_lshl_b32 s6, s4, 3")
    e("s_add_u32 s6, s6, s5")
    e("s_mov_b32 s80, 0")
    e(f"s_mov_b32 s67, 0x{f2u(LOG2E):08x}")
    e("v_mov_b32 v18, 0")
    e(f"v_mov_b32 v{VFF}, 0xff")
    e("v_lshrrev_b32 v2, 3, v0")
    e("v_and_b32 v4, 7, v0")
    e("v_lshlrev_b32 v4, 4, v4")
    e("s_cmp_ge_u32 s3, 4")
    e("s_cbranch_scc1 .Lkv")

    e("s_setprio 3")
    XS, XR = 10, 36
    PP = 20
    A = 36
    DAT = 44
    e("v_lshlrev_b32 v1, 4, v0")
    e("v_lshlrev_b32 v9, 2, v0")
    e("s_getreg_b32 s65, hwreg(HW_REG_XCC_ID, 0, 4)")
    e("s_lshl_b32 s66, s65, 8")
    e("s_mov_b32 s82, 0")
    e("s_cmp_eq_u32 s3, 3")
    e("s_cbranch_scc1 .Lffn")

    def xloads():
        srd(SX, 16, None, 1280)
        e(f"buffer_load_dwordx4 v[{XS}:{XS + 3}], v1, s[{SX}:{SX + 3}], 0 offen")
        e(f"buffer_load_dword v{XS + 4}, v9, s[{SX}:{SX + 3}], 0 offen offset:1024")
        e(f"buffer_load_dwordx4 v[{XR}:{XR + 3}], v3, s[{SX}:{SX + 3}], 0 offen")
        e(f"buffer_load_dword v{XR + 4}, v3, s[{SX}:{SX + 3}], 0 offen offset:16")

    def layernorm(nafter):
        e(f"s_waitcnt vmcnt({nafter})")
        for i in range(5):
            e(f"v_lshlrev_b32 v{PP + 2 * i}, 16, v{XS + i}")
            e(f"v_and_b32 v{PP + 2 * i + 1}, 0xffff0000, v{XS + i}")
        e(f"v_add_f32 v5, v{PP}, v{PP + 1}")
        for i in range(2, 10):
            e(f"v_add_f32 v5, v5, v{PP + i}")
        row_sum(5)
        rows4(5, "v_add_f32")
        e(f"v_mul_f32 v5, 0x{f2u(1.0 / 640):08x}, v5")
        e(f"v_sub_f32 v6, v{PP}, v5")
        e("v_mul_f32 v7, v6, v6")
        for i in range(1, 10):
            e(f"v_sub_f32 v6, v{PP + i}, v5")
            e("v_fmac_f32 v7, v6, v6")
        row_sum(7)
        rows4(7, "v_add_f32")
        e(f"v_mul_f32 v7, 0x{f2u(1.0 / 640):08x}, v7")
        bf16r(5, 6)
        bf16r(7, 6)
        e(f"v_add_f32 v7, 0x{f2u(1e-5):08x}, v7")
        bf16r(7, 6)
        e("v_sqrt_f32 v7, v7")
        bf16r(7, 6)
        e("v_rcp_f32 v8, v7")
        for i in range(5):
            a, b = 10, 11
            e(f"v_lshlrev_b32 v{a}, 16, v{XR + i}")
            e(f"v_and_b32 v{b}, 0xffff0000, v{XR + i}")
            e(f"v_sub_f32 v{a}, v{a}, v5")
            e(f"v_sub_f32 v{b}, v{b}, v5")
            e(f"v_cvt_pk_bf16_f32 v6, v{a}, v{b}")
            e(f"v_lshlrev_b32 v{a}, 16, v6")
            e(f"v_and_b32 v{b}, 0xffff0000, v6")
            for (x, dst) in ((a, PP + 2 * i), (b, PP + 2 * i + 1)):
                q, r = 12, 13
                e(f"v_mul_f32 v{q}, v{x}, v8")
                e(f"v_fma_f32 v{r}, -v{q}, v7, v{x}")
                e(f"v_fma_f32 v{q}, v{r}, v8, v{q}")
                e(f"v_cvt_pk_bf16_f32 v{dst}, v{q}, v{q}")

    def buildA(src, dst=None):
        dst = A if dst is None else dst
        for k in range(4):
            e(f"v_perm_b32 v{dst + k}, v{src}, v{src}, v{SEL + k}")

    def combine_halves(D, t0, t1):
        for r in range(4):
            e(f"v_mov_b32_dpp v{t0 + r}, v{D + r} row_ror:8 {DPPM}")
        for r in range(4):
            e(f"v_permlane32_swap_b32 v{t0 + r}, v{t1 + r}")
        for r in range(4):
            e(f"v_add_f32 v{D + r}, v{D + r}, v{t1 + r}")

    def nonce_wait(vF, tg):
        e.label(f".Lfl_{tg}")
        e("s_waitcnt vmcnt(0)")
        e(f"v_readfirstlane_b32 s81, v{vF}")
        e("s_cmp_lg_u32 s81, 0")
        e(f"s_cbranch_scc1 .Lfl_{tg}_ok")
        e("s_sleep 2")
        e(f"buffer_load_dword v{vF}, v18, s[{SDBG}:{SDBG + 3}], 0 offen sc1")
        spin_check(f".Lfl_{tg}")
        e.label(f".Lfl_{tg}_ok")
        e("s_mov_b32 s80, 0")
        nonce_regs()

    e("v_mul_u32_u24 v3, 20, v2")
    e("s_mul_i32 s7, s5, 160")
    e("v_add_u32 v3, s7, v3")
    e("s_mul_i32 s7, s5, 983040")
    e("s_mul_i32 s8, s4, 384")
    e("s_add_u32 s7, s7, s8")
    e("s_lshl_b32 s8, s3, 7")
    e("s_add_u32 s7, s7, s8")
    e("s_mov_b32 s8, 122880")
    e("v_mul_lo_u32 v5, v2, s8")
    e("v_add_u32 v5, v5, v4")
    e("s_waitcnt lgkmcnt(0)")
    xloads()
    srd(SW, 22, "s7", 79 * 12288 + 128)
    e("s_mov_b32 s7, 0")
    for t in range(10):
        e(f"buffer_load_dwordx4 v[{DAT + 4 * t}:{DAT + 4 * t + 3}], v5, s[{SW}:{SW + 3}], s7 offen{POL}")
        if t < 9:
            e("s_add_u32 s7, s7, 12288")
        if t == hpre - 1:
            e("s_barrier")
    srd(SWS, 38, None, WS_USED)
    srd(SDBG, 36, None, 256)
    e("s_cmp_lg_u32 s3, 0")
    e("s_cbranch_scc1 .Lnozf")
    for r in range(4):
        e(f"v_mov_b32 v{20 + r}, 0")
    e("s_lshl_b32 s7, s6, 10")
    e(f"s_add_u32 s7, s7, {OP}")
    e(f"buffer_store_dwordx4 v[20:23], v1, {WSR}, s7 offen")
    e.label(".Lnozf")
    if nearly:
        e(f"buffer_load_dword v19, v18, s[{SDBG}:{SDBG + 3}], 0 offen sc1")
    selectors(5, 6, 7)
    layernorm(10 + nearly)
    if not nearly:
        e(f"buffer_load_dword v19, v18, s[{SDBG}:{SDBG + 3}], 0 offen sc1")
    stamp(1)
    D = 84
    for t in range(10):
        buildA(PP + t)
        e(f"s_waitcnt vmcnt({10 - t})")
        mfma(D, A, DAT + 4 * t, t == 0)
    stamp(2)
    if floor:
        stamps_flush(3)
        e("s_endpgm")
    combine_halves(D, 88, 92)
    e("v_and_b32 v17, 15, v0")
    e("v_lshlrev_b32 v17, 5, v17")
    e("v_lshrrev_b32 v6, 4, v0")
    e("v_lshl_add_u32 v17, v6, 4, v17")
    e("s_lshl_b32 s10, s3, 16")
    e("s_lshl_b32 s7, s6, 8")
    e("s_add_u32 s10, s10, s7")
    e(f"s_add_u32 s11, s10, {BOFF}")
    e("s_lshl_b32 s9, s4, 9")
    e("s_lshl_b32 s7, s3, 7")
    e("s_add_u32 s9, s9, s7")
    e(f"s_add_u32 s9, s9, {QID}")
    e("s_lshl_b32 s7, s5, 4")
    e("s_add_u32 s7, s7, s9")
    e("s_sub_u32 s7, s7, s10")
    e("v_writelane_b32 v17, s7, 8")
    for r in range(4):
        e(f"v_writelane_b32 v{D + r}, s66, 8")
    e("s_lshl_b32 s8, s3, 16")
    e("s_lshl_b32 s7, s4, 11")
    e("s_add_u32 s8, s8, s7")
    e("v_mov_b32 v16, v4")
    if mlwarm:
        e("s_lshl_b32 s7, s3, 7")
        e("s_sub_u32 s7, 384, s7")
        e("v_writelane_b32 v16, s7, 8")
    nonce_wait(19, "q")
    for r in range(4):
        tag(D + r, D + r, NS[r])
    stamp(3)
    e("s_mov_b64 exec, 0x00ff01ff")
    e(f"buffer_store_dwordx4 v[{D}:{D + 3}], v17, {WSR}, s10 offen")
    e("s_mov_b64 exec, -1")
    def q_storeB():
        e("s_mov_b64 exec, 0x00ff01ff")
        e(f"buffer_store_dwordx4 v[{D}:{D + 3}], v17, {WSR}, s11 offen sc1")
        e("s_mov_b64 exec, -1")
    e("v_mov_b32 v15, v1")
    if qs0:
        e(f"s_sleep {qs0}")
    e.label(".Lqg")
    e(f"buffer_load_dwordx4 v[{DAT}:{DAT + 3}], v15, {WSR}, s8 offen sc1")
    e(f"buffer_load_dwordx4 v[{DAT + 4}:{DAT + 7}], v15, {WSR}, s8 offen offset:1024 sc1")
    e(f"s_mov_b64 exec, {'0x1ff' if mlwarm else '0xff'}")
    e(f"buffer_load_dwordx4 v[{DAT + 8}:{DAT + 11}], v16, {WSR}, s9 offen sc1")
    e("s_mov_b64 exec, 0xff")
    e("s_waitcnt vmcnt(0)")
    tags_ok([(DAT + 8 + k, NS[k]) for k in range(4)], 5, ".Lqg_id")
    e("s_mov_b64 exec, -1")
    e("s_branch .Lqg_re")
    e.label(".Lqg_id")
    e("s_mov_b64 exec, -1")
    tags_ok([(DAT + k, NS[k % 4]) for k in range(8)], 5, ".Lqg_ok")
    e.label(".Lqg_re")
    e(f"s_sleep {qs1}")
    fallback_retry("q", ".Lqg", [15, 16], q_storeB)
    e.label(".Lqg_ok")
    e("s_mov_b64 exec, 0xff")
    xcc_check("q", DAT + 8, 5, q_storeB)
    e("s_mov_b64 exec, -1")
    untag(range(DAT, DAT + 8))
    for r in range(4):
        e(f"v_add_f32 v{DAT + r}, v{DAT + r}, v{DAT + 4 + r}")
    rows_sum4(DAT, DAT + 4)
    e(f"v_cvt_pk_bf16_f32 v6, v{DAT}, v{DAT + 1}")
    e(f"v_cvt_pk_bf16_f32 v7, v{DAT + 2}, v{DAT + 3}")
    e("s_lshl_b32 s7, s3, 7")
    e("v_and_b32 v5, 15, v0")
    e("v_lshlrev_b32 v5, 3, v5")
    e("v_add_u32 v5, s7, v5")
    e(f"ds_write_b64 v5, v[6:7] offset:{QBUF}")
    e("v_mov_b32 v5, s83")
    e(f"ds_write_b32 v18, v5 offset:{QFL + 12}")
    e("s_lshl_b32 s7, s3, 2")
    e("v_mov_b32 v6, s7")
    e("v_mov_b32 v5, s81")
    e("s_waitcnt lgkmcnt(0)")
    e(f"ds_write_b32 v6, v5 offset:{QFL}")
    stamp(4)

    SO_ = 48
    e("s_lshl_b32 s75, s4, 13")
    e("s_lshl_b32 s7, s5, 4")
    e("s_add_u32 s75, s75, s7")
    e(f"s_add_u32 s75, s75, {OP}")
    e("s_add_u32 s75, s75, s83")
    e("s_lshl_b32 s76, s4, 9")
    e("s_add_u32 s76, s76, s7")
    e(f"s_add_u32 s76, s76, {QID + 384}")
    e("s_add_u32 s76, s76, s83")
    e("s_lshl_b32 s7, s3, 6")
    e("v_add_u32 v24, s7, v0")
    e("v_mul_u32_u24 v22, 0x5556, v24")
    e("v_lshrrev_b32 v22, 16, v22")
    e("v_mul_u32_u24 v21, 3, v22")
    e("v_sub_u32 v21, v24, v21")
    e("v_lshlrev_b32 v22, 7, v22")
    e("v_lshl_add_u32 v22, v21, 2, v22")
    e("v_lshlrev_b32 v21, 3, v21")
    e("v_lshrrev_b32 v30, v21, s81")
    e("v_lshlrev_b32 v24, 2, v24")
    e("s_mov_b32 s70, 0")
    e("s_cmp_lg_u32 s3, 0")
    e("s_cbranch_scc1 .Lnoz")
    e("s_and_b32 s74, s6, 31")
    e("s_cmp_ge_u32 s74, 10")
    e("s_cbranch_scc1 .Lnoz")
    e("s_mov_b32 s70, 1")
    e("s_lshr_b32 s7, s6, 5")
    e("s_mul_i32 s8, s7, 160")
    e("s_lshl_b32 s9, s74, 4")
    e("s_add_u32 s8, s8, s9")
    e("v_and_b32 v5, 1, v0")
    e("v_lshlrev_b32 v25, 3, v5")
    e("v_bfe_u32 v6, v0, 4, 1")
    e("v_lshl_add_u32 v25, v6, 2, v25")
    e("v_lshrrev_b32 v6, 5, v0")
    e("v_lshl_add_u32 v25, v6, 1, v25")
    e("v_add_u32 v25, s8, v25")
    e("s_lshl_b32 s9, s8, 6")
    e(f"s_add_u32 s73, s9, {ZP}")
    if ylay:
        e(f"s_add_u32 s71, s9, {YP}")
        e("v_mov_b32 v28, v1")
    else:
        e("v_lshrrev_b32 v28, 1, v0")
        e("v_mul_u32_u24 v28, 3072, v28")
        e("v_lshl_add_u32 v28, v5, 4, v28")
        e("s_mul_i32 s71, s7, 384")
        e("s_lshl_b32 s9, s74, 5")
        e("s_add_u32 s71, s71, s9")
        e(f"s_add_u32 s71, s71, {YP}")
    e("s_mov_b32 s78, 0x00030003")
    e("s_mov_b32 s79, 0x00030003")
    srd(SO_, 34, None, 1280)
    e.label(".Lnoz")
    e("s_cmp_eq_u32 s83, 0")
    e("s_cbranch_scc1 .Lnozb")
    e("s_cmp_lg_u32 s3, 2")
    e("s_cbranch_scc1 .Lnozb")
    for r in range(4):
        e(f"v_mov_b32 v{64 + r}, 0")
    e("v_lshlrev_b32 v12, 7, v0")
    e(f"buffer_store_dwordx4 v[64:67], v12, {WSR}, s75 offen sc1")
    e("s_waitcnt vmcnt(0)")
    e.label(".Lnozb")
    stamp(5)
    e.label(".Lms")
    for i in range(4):
        e(f"ds_read_b128 v[{40 + 4 * i}:{43 + 4 * i}], v18 offset:{MSL + 16 * i}")
    e("s_waitcnt lgkmcnt(0)")
    e("v_max3_u32 v19, v40, v41, v42")
    for i in range(6):
        e(f"v_max3_u32 v19, v19, v{43 + 2 * i}, v{44 + 2 * i}")
    e("v_max_u32 v19, v19, v55")
    e("v_cmp_eq_u32 vcc, -1, v19")
    e("s_cbranch_vccz .Lms_ok")
    e(f"s_sleep {mss}")
    spin_check(".Lms", 10)
    e.label(".Lms_ok")
    e("s_mov_b32 s80, 0")
    MX = 10
    e(f"v_max3_f32 v{MX}, v40, v41, v42")
    e(f"v_max3_f32 v{MX}, v{MX}, v43, v44")
    e(f"v_max3_f32 v{MX}, v{MX}, v45, v46")
    e(f"v_max_f32 v{MX}, v{MX}, v47")
    for i in range(8):
        e(f"v_sub_f32 v{40 + i}, v{40 + i}, v{MX}")
    for i in range(8):
        e(f"v_mul_f32 v{40 + i}, s67, v{40 + i}")
    for i in range(8):
        e(f"v_exp_f32 v{40 + i}, v{40 + i}")
    e("s_cmp_lg_u32 s3, 2")
    e("s_cbranch_scc1 .Lnol")
    e("v_mul_f32 v11, v40, v48")
    for i in range(1, 8):
        e(f"v_fmac_f32 v11, v{40 + i}, v{48 + i}")
    tag(56, 10, NS[0])
    tag(57, 11, NS[1])
    tag(58, 10, NS[2])
    tag(59, 11, NS[3])
    e("s_mov_b64 exec, 1")
    e("s_cmp_lg_u32 s83, 0")
    e("s_cbranch_scc1 .Lml_b")
    e(f"buffer_store_dwordx4 v[56:59], v18, {WSR}, s76 offen")
    e("s_branch .Lml_e")
    e.label(".Lml_b")
    e(f"buffer_store_dwordx4 v[56:59], v18, {WSR}, s76 offen sc1")
    e.label(".Lml_e")
    e("s_lshl_b32 s7, s5, 4")
    e("s_sub_u32 s76, s76, s7")
    e("s_mov_b64 exec, 0xff")
    e.label(".Lml")
    e(f"buffer_load_dwordx4 v[60:63], v4, {WSR}, s76 offen sc1")
    e("s_waitcnt vmcnt(0)")
    tags_ok([(60 + k, NS[k]) for k in range(4)], 5, ".Lml_ok")
    e(f"s_sleep {mlp}")
    spin_check(".Lml")
    e.label(".Lml_ok")
    e("s_mov_b32 s80, 0")
    untag([60, 61])
    e("v_mov_b32 v62, v60")
    for pat in P8:
        e(f"v_max_f32_dpp v62, v62, v62 {pat} {DPPM}")
    e("v_sub_f32 v60, v60, v62")
    e(f"v_sub_f32 v62, v{MX}, v62")
    e("v_mul_f32 v60, s67, v60")
    e("v_mul_f32 v62, s67, v62")
    e("v_exp_f32 v60, v60")
    e("v_exp_f32 v62, v62")
    e("v_mul_f32 v60, v60, v61")
    for pat in P8:
        e(f"v_add_f32_dpp v60, v60, v60 {pat} {DPPM}")
    e("v_rcp_f32 v60, v60")
    e("v_mul_f32 v60, v60, v62")
    e(f"ds_write_b32 v18, v60 offset:{VCN + 4}")
    e("s_mov_b64 exec, -1")
    e.label(".Lnol")
    e("s_cmp_eq_u32 s70, 0")
    e("s_cbranch_scc1 .Lnozl")
    e(f"buffer_load_ushort v26, v25, s[{SX}:{SX + 3}], 0 offen")
    e(f"buffer_load_dwordx4 v[100:103], v1, {WSR}, s73 offen sc1")
    e.label(".Lnozl")
    if ylay:
        e("s_mul_i32 s77, s5, 10240")
        e("s_lshl_b32 s7, s4, 5")
        e("s_add_u32 s77, s77, s7")
        e(f"s_add_u32 s77, s77, {YP}")
        e("v_lshrrev_b32 v23, 1, v0")
        e("v_lshlrev_b32 v23, 10, v23")
        e("v_and_b32 v5, 1, v0")
        e("v_lshl_add_u32 v23, v5, 4, v23")
    else:
        e("s_mul_i32 s77, s6, 384")
        e(f"s_add_u32 s77, s77, {YP}")
        e("v_mov_b32 v23, v1")
    e("s_cmp_lg_u32 s83, 0")
    e("s_waitcnt lgkmcnt(0)")
    e("s_barrier")
    e(f"ds_read_b32 v81, v18 offset:{VCN + 4}")
    for p in range(8):
        e(f"ds_read2st64_b32 v[{64 + 2 * p}:{65 + 2 * p}], v24 offset0:{OPART // 256 + 6 * p} offset1:{OPART // 256 + 6 * p + 3}")
    for p in range(8):
        e(f"s_waitcnt lgkmcnt({7 - p})")
        e(f"v_add_f32 v{64 + 2 * p}, v{64 + 2 * p}, v{65 + 2 * p}")
        if p < 2:
            e(f"v_mul_f32 v{82 + p}, v{40 + p}, v{64 + 2 * p}")
        else:
            e(f"v_fmac_f32 v{82 + p % 2}, v{40 + p}, v{64 + 2 * p}")
    e("v_add_f32 v80, v82, v83")
    e("v_mul_f32 v80, v80, v81")
    tag(80, 80, "v30")
    e("s_cbranch_scc1 .Lo_b", safe_branch=True)
    e(f"buffer_store_dword v80, v22, {WSR}, s75 offen")
    e.label(".Lo_e")
    stamp(6)
    e("s_cmp_eq_u32 s3, 1")
    e("s_cbranch_scc1 .Lyred")
    e("s_cmp_eq_u32 s70, 0")
    e("s_cbranch_scc1 .Lfin_stamp")
    e("s_waitcnt vmcnt(1)")
    tags_ok([(100 + r, NS[r]) for r in range(4)], 5, ".Lzg_ok")
    e("s_barrier")
    e("s_mov_b32 s70, 2")
    e.label(".Lzg")
    e(f"buffer_load_dwordx4 v[100:103], v1, {WSR}, s73 offen sc1")
    e("s_waitcnt vmcnt(0)")
    tags_ok([(100 + r, NS[r]) for r in range(4)], 5, ".Lzg_ok")
    spin_check(".Lzg")
    e.label(".Lzg_ok")
    e("s_mov_b32 s80, 0")
    untag(range(100, 104))
    col_sum(100)
    bf16r(100, 104)
    e("v_mul_f32 v104, s67, v100")
    e("v_exp_f32 v104, -v104")
    e("v_add_f32 v104, 1.0, v104")
    e("v_rcp_f32 v105, v104")
    e("v_mul_f32 v106, v100, v105")
    e("v_fma_f32 v107, -v106, v104, v100")
    e("v_fma_f32 v107, v107, v105, v106")
    e("v_cmp_o_f32 vcc, v107, v107")
    e("v_cndmask_b32 v100, v106, v107, vcc")
    bf16r(100, 104)
    e("v_lshlrev_b32 v108, 16, v26")
    e("s_cmp_eq_u32 s70, 2")
    e("s_cbranch_scc1 .Lyg")
    e("s_barrier")
    e.label(".Lyg")
    e(f"buffer_load_dwordx4 v[84:87], v28, {WSR}, s71 offen sc1")
    e("s_waitcnt vmcnt(0)")
    tags_ok([(84 + r, NS[r]) for r in range(4)], 5, ".Lyg_ok")
    if ysl:
        e(f"s_sleep {ysl}")
    spin_check(".Lyg")
    e.label(".Lyg_ok")
    untag(range(84, 88))
    col_sum(84)
    bf16r(84, 88)
    e("v_mul_f32 v84, v84, v100")
    bf16r(84, 88)
    e("v_add_f32 v84, v84, v108")
    e("v_cvt_pk_bf16_f32 v88, v84, v84")
    e("s_mov_b64 exec, s[78:79]")
    e(f"buffer_store_short v88, v25, s[{SO_}:{SO_ + 3}], 0 offen")
    if spank:
        e("s_cmp_lg_u32 s2, 0")
        e("s_cbranch_scc1 .Lfin_stamp")
        e("s_memrealtime s[8:9]")
        e("s_waitcnt lgkmcnt(0)")
        e("s_sub_u32 s10, s8, s72")
        e(f"s_mul_i32 s10, s10, {spank}")
        e("s_add_u32 s10, s10, s8")
        e.label(".Lspank")
        e("s_memrealtime s[8:9]")
        e("s_waitcnt lgkmcnt(0)")
        e("s_sub_u32 s11, s8, s10")
        e("s_cmp_lt_i32 s11, 0")
        e("s_cbranch_scc1 .Lspank")
    e.label(".Lfin_stamp")
    stamp(7)
    stamps_flush(8)
    e("s_endpgm")
    e.label(".Lo_b")
    e(f"buffer_store_dword v80, v22, {WSR}, s75 offen sc1")
    e("s_branch .Lo_e")
    e.label(".Lyred")
    e("s_mov_b64 exec, 0xfffff")
    if stamps:
        e("s_waitcnt lgkmcnt(0)")
    e("s_barrier")
    for p in range(8):
        e(f"ds_read_b128 v[{84 + 4 * p}:{87 + 4 * p}], v1 offset:{YPART + 384 * p}")
    for p in range(1, 8, 2):
        e(f"s_waitcnt lgkmcnt({7 - p})")
        for r in range(4):
            e(f"v_add_f32 v{80 + 4 * p + r}, v{80 + 4 * p + r}, v{84 + 4 * p + r}")
        if p == 3 or p == 7:
            for r in range(4):
                e(f"v_add_f32 v{72 + 4 * p + r}, v{72 + 4 * p + r}, v{80 + 4 * p + r}")
    for r in range(4):
        e(f"v_add_f32 v{84 + r}, v{84 + r}, v{100 + r}")
    for r in range(4):
        tag(84 + r, 84 + r, NS[r])
    e(f"buffer_store_dwordx4 v[84:87], v23, {WSR}, s77 offen sc1")
    e("s_branch .Lfin_stamp")

    e.label(".Lffn")
    G0, U0, W0 = DAT, DAT + 40, 120
    e("s_and_b32 s68, s6, 15")
    e("s_lshr_b32 s69, s6, 4")
    e("v_lshrrev_b32 v42, 4, v0")
    e("v_and_b32 v43, 15, v0")
    e("v_mul_u32_u24 v3, 20, v42")
    e("s_mul_i32 s7, s68, 80")
    e("v_add_u32 v3, s7, v3")
    e("s_mul_i32 s7, s68, 122880")
    e("s_mul_i32 s8, s69, 192")
    e("s_add_u32 s7, s7, s8")
    e("v_mul_u32_u24 v5, 30720, v42")
    e("v_lshl_add_u32 v5, v43, 4, v5")
    e("v_cmp_gt_u32 vcc, 12, v43")
    e("v_mov_b32 v6, 0x7ffffff0")
    e("v_cndmask_b32 v5, v6, v5, vcc")
    e("s_waitcnt lgkmcnt(0)")
    xloads()
    srd(SW, 28, "s7", 39 * 3072 + 192)
    srd(SU, 30, "s7", 39 * 3072 + 192)
    e("s_mov_b32 s7, 0")
    for t in range(10):
        e(f"buffer_load_dwordx4 v[{G0 + 4 * t}:{G0 + 4 * t + 3}], v5, s[{SW}:{SW + 3}], s7 offen{POL}")
        e(f"buffer_load_dwordx4 v[{U0 + 4 * t}:{U0 + 4 * t + 3}], v5, s[{SU}:{SU + 3}], s7 offen{POL}")
        if t < 9:
            e("s_add_u32 s7, s7, 3072")
        if t == hpre // 2 - 1:
            e("s_barrier")
    srd(SWS, 38, None, WS_USED)
    srd(SDBG, 36, None, 256)
    if nearly:
        e(f"buffer_load_dword v19, v18, s[{SDBG}:{SDBG + 3}], 0 offen sc1")
    selectors(5, 7, 8)
    layernorm(20 + nearly)
    if not nearly:
        e(f"buffer_load_dword v19, v18, s[{SDBG}:{SDBG + 3}], 0 offen sc1")
    stamp(1)
    DG, DU = 10, 14
    for t in range(10):
        buildA(PP + t)
        e(f"s_waitcnt vmcnt({21 - 2 * t - 1})")
        mfma(DG, A, G0 + 4 * t, t == 0)
        e(f"s_waitcnt vmcnt({21 - 2 * t - 2})")
        mfma(DU, A, U0 + 4 * t, t == 0)
    stamp(2)
    e("v_lshlrev_b32 v40, 6, v43")
    e("v_and_b32 v6, 1, v42")
    e("v_lshl_add_u32 v40, v6, 5, v40")
    e("v_lshrrev_b32 v6, 1, v42")
    e("v_lshl_add_u32 v40, v6, 4, v40")
    e("s_mul_i32 s10, s6, 768")
    e(f"s_add_u32 s10, s10, {GU - GID}")
    e("v_add_u32 v40, s10, v40")
    e("s_lshl_b32 s7, s6, 4")
    e("v_writelane_b32 v40, s7, 12")
    e(f"s_mov_b32 s10, {GID}")
    e(f"s_mov_b32 s11, {GID + BOFF}")
    e("s_mov_b32 s78, 0")
    e("s_mov_b32 s79, -1")
    e(f"v_cndmask_b32 v60, v{DG}, v{DG + 2}, s[78:79]")
    e(f"v_cndmask_b32 v61, v{DU}, v{DU + 2}, s[78:79]")
    e(f"v_cndmask_b32 v62, v{DG + 1}, v{DG + 3}, s[78:79]")
    e(f"v_cndmask_b32 v63, v{DU + 1}, v{DU + 3}, s[78:79]")
    for r in range(4):
        e(f"v_writelane_b32 v{60 + r}, s66, 12")
    e("s_mov_b32 s78, 0x0fff1fff")
    e("s_mov_b32 s79, 0x0fff0fff")
    if floor:
        e("s_branch .Lffn_down")
    nonce_wait(19, "f")
    for r in range(4):
        tag(60 + r, 60 + r, NS[r])
    stamp(3)
    def f_store(so, pol):
        e("s_mov_b64 exec, s[78:79]")
        e(f"buffer_store_dwordx4 v[60:63], v40, {WSR}, {so} offen{pol}")
        e("s_mov_b64 exec, -1")
    f_store("s10", "")
    def f_storeB():
        f_store("s11", " sc1")
    e.label(".Lffn_down")
    e("s_mul_i32 s7, s4, 61440")
    e("s_mul_i32 s8, s5, 160")
    e("s_add_u32 s7, s7, s8")
    srd(SD, 32, "s7", 47 * 1280 + 160)
    e("v_mul_u32_u24 v5, 15360, v42")
    e("v_lshl_add_u32 v5, v43, 4, v5")
    e("v_cmp_gt_u32 vcc, 10, v43")
    e("v_mov_b32 v6, 0x7ffffff0")
    e("v_cndmask_b32 v5, v6, v5, vcc")
    e("s_mov_b32 s7, 0")
    for qq in range(12):
        e(f"buffer_load_dwordx4 v[{W0 + 4 * qq}:{W0 + 4 * qq + 3}], v5, s[{SD}:{SD + 3}], s7 offen{POL}")
        if qq < 11:
            e("s_add_u32 s7, s7, 1280")
    if floor:
        e("s_waitcnt vmcnt(0)")
        stamp(4)
        stamps_flush(5)
        e("s_endpgm")
    e("s_mul_i32 s8, s69, 12288")
    e("s_and_b32 s7, s4, 1")
    e("s_mul_i32 s7, s7, 384")
    e("s_add_u32 s8, s8, s7")
    e(f"s_add_u32 s8, s8, {GU}")
    for i in range(1, 4):
        e(f"s_add_u32 s{72 + i}, s8, {3072 * i}")
    e("s_lshl_b32 s9, s69, 8")
    e(f"s_add_u32 s9, s9, {GID}")
    e("v_and_b32 v9, 31, v0")
    e("v_min_u32 v9, 23, v9")
    e("v_lshrrev_b32 v6, 5, v0")
    e("v_mul_u32_u24 v5, 768, v6")
    e("v_lshl_add_u32 v5, v9, 4, v5")
    e("v_lshlrev_b32 v41, 4, v43")
    if gs0:
        e(f"s_sleep {gs0}")
    e.label(".Lgg")
    for i in range(8):
        so = "s8" if i < 2 else f"s{72 + i // 2}"
        e(f"buffer_load_dwordx4 v[{68 + 4 * i}:{71 + 4 * i}], v5, {WSR}, {so} offen offset:{(i % 2) * 1536} sc1")
    e("s_mov_b64 exec, 0xffff")
    e(f"buffer_load_dwordx4 v[100:103], v41, {WSR}, s9 offen sc1")
    e("s_waitcnt vmcnt(0)")
    tags_ok([(100 + k, NS[k]) for k in range(4)], 6, ".Lgg_id")
    e("s_mov_b64 exec, -1")
    e("s_branch .Lgg_re")
    e.label(".Lgg_id")
    e("s_mov_b64 exec, -1")
    tags_ok([(68 + k, NS[k % 4]) for k in range(32)], 6, ".Lgg_ok")
    e.label(".Lgg_re")
    e(f"s_sleep {qs1}")
    fallback_retry("f", ".Lgg", [5, 41], f_storeB)
    e.label(".Lgg_ok")
    e("s_mov_b64 exec, 0xffff")
    xcc_check("f", 100, 6, f_storeB)
    e("s_mov_b64 exec, -1")
    untag(range(68, 100))
    for i in range(1, 8):
        for r in range(4):
            e(f"v_add_f32 v{68 + r}, v{68 + r}, v{68 + 4 * i + r}")
    for r in range(4):
        e(f"v_mov_b32 v{72 + r}, v{68 + r}")
    for r in range(4):
        e(f"v_permlane32_swap_b32 v{68 + r}, v{72 + r}")
    for r in range(4):
        e(f"v_add_f32 v{68 + r}, v{68 + r}, v{72 + r}")
    round4(68, 72)
    e("v_mul_f32 v68, v68, v69")
    e("v_mul_f32 v70, v70, v71")
    e("v_cvt_pk_bf16_f32 v6, v68, v70")
    e("v_lshlrev_b32 v5, 2, v9")
    e(f"ds_write_b32 v5, v6 offset:{HBUF}")
    e("v_mul_u32_u24 v5, 24, v42")
    e("s_waitcnt lgkmcnt(0)")
    for i in range(3):
        e(f"ds_read_b64 v[{70 + 2 * i}:{71 + 2 * i}], v5 offset:{HBUF + 8 * i}")
    e("s_waitcnt lgkmcnt(0)")
    DZ = 10
    for qq in range(12):
        src = 70 + qq // 2
        if qq % 2 == 0:
            e(f"v_and_b32 v6, 0xffff, v{src}")
        else:
            e(f"v_lshrrev_b32 v6, 16, v{src}")
        buildA(6)
        mfma(DZ, A, W0 + 4 * qq, qq == 0)
    e("v_lshlrev_b32 v5, 10, v43")
    e("v_lshl_add_u32 v5, v42, 4, v5")
    e("s_mul_i32 s8, s5, 10240")
    e("s_lshl_b32 s7, s4, 5")
    e("s_add_u32 s8, s8, s7")
    e(f"s_add_u32 s8, s8, {ZP}")
    for r in range(4):
        tag(DZ + r, DZ + r, NS[r])
    e("s_mov_b64 exec, 0x03ff03ff")
    e(f"buffer_store_dwordx4 v[{DZ}:{DZ + 3}], v5, {WSR}, s8 offen sc1")
    stamp(4)
    stamps_flush(5)
    e("s_endpgm")

    e.label(".Lkv")
    SK, SV, SO = 40, 44, 48
    K0, V0, WO, S0 = 40, 88, 136, 8
    QR = [160, 164, 20]
    e("s_sub_u32 s64, s3, 4")
    e("v_mul_u32_u24 v3, 384, v2")
    e("v_add_u32 v3, v3, v4")
    e("s_mul_i32 s7, s4, 3145728")
    e("s_mul_i32 s8, s5, 98304")
    e("s_add_u32 s7, s7, s8")
    e("s_mul_i32 s8, s64, 12288")
    e("s_add_u32 s7, s7, s8")
    e(f"s_add_u32 s7, s7, {6144 * 384}")
    ra, rb, rc, rd = [int(ch) for ch in str(rot)[1:]]
    e(f"s_mul_i32 s8, s64, {ra}")
    if rb:
        e(f"s_mul_i32 s9, s5, {rb}")
        e("s_add_u32 s8, s8, s9")
    if rc:
        e(f"s_mul_i32 s9, s4, {rc}")
        e("s_add_u32 s8, s8, s9")
    if rd:
        e("s_lshr_b32 s9, s4, 2")
        e(f"s_mul_i32 s9, s9, {rd}")
        e("s_add_u32 s8, s8, s9")
    for t in range(4):
        e(f"s_add_u32 s9, s8, {t}")
        e("s_and_b32 s9, s9, 3")
        e(f"s_mul_i32 s{74 + t}, s9, 3072")
    e("s_cmp_lg_u32 s3, 11")
    e("s_cbranch_scc1 .Lnoinit")
    e("v_min_u32 v5, 20, v0")
    e("v_lshlrev_b32 v5, 2, v5")
    e("v_mov_b32 v6, -1")
    e(f"ds_write_b32 v5, v6 offset:{MSL}")
    e("s_cmp_lg_u32 s2, 0")
    e("s_cbranch_scc1 .Lnoinit")
    e("s_waitcnt lgkmcnt(0)")
    srd(SDBG, 36, None, 256)
    e("s_bfe_u32 s10, s72, 0x70004")
    e("s_bfe_u32 s8, s72, 0x7000b")
    e("s_lshl_b32 s8, s8, 8")
    e("s_or_b32 s10, s10, s8")
    e("s_bfe_u32 s8, s72, 0x70012")
    e("s_lshl_b32 s8, s8, 16")
    e("s_or_b32 s10, s10, s8")
    e("s_bfe_u32 s8, s72, 0x60019")
    e("s_lshl_b32 s8, s8, 24")
    e("s_or_b32 s10, s10, s8")
    e("s_or_b32 s10, s10, 0x80808080")
    e("v_mov_b32 v6, s10")
    e("s_mov_b64 exec, 1")
    e(f"buffer_store_dword v6, v18, s[{SDBG}:{SDBG + 3}], 0 offen sc1")
    e("s_mov_b64 exec, -1")
    e.label(".Lnoinit")
    e("s_waitcnt lgkmcnt(0)")
    srd(SK, 18, "s7", 12288)
    if touch:
        e("s_cmp_lg_u32 s3, 10")
        e("s_cbranch_scc1 .Lnotouch")
        e("s_mov_b64 exec, 1")
        srd(SV, 20, "s7", 12288)
        e(f"buffer_load_dword v8, v18, s[{SV}:{SV + 3}], 0 offen nt")
        e("s_mul_i32 s8, s4, 245760")
        srd(SO, 24, "s8", 245760)
        e(f"buffer_load_dword v9, v18, s[{SO}:{SO + 3}], 0 offen nt")
        e("s_mul_i32 s8, s4, 61440")
        srd(SO, 32, "s8", 61440)
        e(f"buffer_load_dword v10, v18, s[{SO}:{SO + 3}], 0 offen nt")
        srd(SWS, 38, None, WS_USED)
        e(f"s_mov_b32 s8, {WS_USED - 4096}")
        e(f"buffer_load_dword v11, v18, {WSR}, s8 offen nt")
        srd(SO, 34, None, 1280)
        e(f"buffer_load_dword v12, v18, s[{SO}:{SO + 3}], 0 offen nt")
        e("s_mov_b64 exec, -1")
        e.label(".Lnotouch")

    def side_work(n):
        if n == kvpre:
            e("s_barrier")
        if n == TH:
            srd(SV, 20, "s7", 12288)
            srd(SWS, 38, None, WS_USED)
            e("v_and_b32 v1, 15, v0")
            e("v_lshrrev_b32 v2, 4, v0")
            e("v_mul_u32_u24 v6, 7680, v2")
            e("v_lshl_add_u32 v6, v1, 4, v6")
            e("v_cmp_gt_u32 vcc, 10, v1")
            e("v_mov_b32 v7, 0x7ffffff0")
            e("v_cndmask_b32 v6, v7, v6, vcc")
            e("s_mul_i32 s7, s4, 245760")
            e("s_mul_i32 s8, s64, 30720")
            e("s_add_u32 s7, s7, s8")
            e("s_mul_i32 s8, s5, 160")
            e("s_add_u32 s7, s7, s8")
            srd(SO, 24, "s7", 23 * 1280 + 160)
            e("s_movk_i32 s66, 3840")
            selectors(7, 8, 9)
            e("v_lshrrev_b32 v16, 5, v0")
            e("v_mul_u32_u24 v16, 768, v16")
            e("v_lshl_add_u32 v16, v4, 1, v16")
            e("v_and_b32 v13, 1, v2")
            e("v_lshl_add_u32 v16, v13, 4, v16")
            e("s_mul_i32 s7, s64, 1536")
            e("v_add_u32 v16, s7, v16")
            e("s_lshl_b32 s7, s64, 2")
            e("v_mov_b32 v17, s7")
            e("v_lshlrev_b32 v14, 4, v0")
            e("s_lshl_b32 s69, s4, 13")
            e("s_lshl_b32 s7, s64, 10")
            e("s_add_u32 s69, s69, s7")
            e(f"s_add_u32 s69, s69, {OP}")
            e("v_lshlrev_b32 v19, 5, v1")
            e("v_lshl_add_u32 v19, v2, 4, v19")
            e("s_mul_i32 s7, s64, 384")
            e("v_add_u32 v19, s7, v19")
            e("s_mov_b32 s78, 0x00ff00ff")
            e("s_mov_b32 s79, 0xff00ff00")
            e(f"s_mov_b32 s70, 0x{f2u(192.0 ** -0.5):08x}")
            if xb:
                packed = sum(int(ch) << (4 * i) for i, ch in enumerate(f"{xb:08d}"))
                e("s_lshr_b32 s8, s4, 2")
                e("s_lshl_b32 s8, s8, 2")
                e(f"s_lshr_b32 s72, 0x{packed:08x}, s8")
                e("s_and_b32 s72, s72, 15")
    MX, AP, O = 12, 40, 56

    def chunkA():
        e.label(".Lqs")
        e(f"ds_read_b128 v[36:39], v18 offset:{QFL}")
        for r3 in range(3):
            e(f"ds_read_b128 v[{QR[r3]}:{QR[r3] + 3}], v4 offset:{QBUF + 128 * r3}")
        e("s_waitcnt lgkmcnt(0)")
        e("v_max3_u32 v13, v36, v37, v38")
        e("v_cmp_eq_u32 vcc, -1, v13")
        e("s_cbranch_vccz .Lqs_ok")
        e("s_sleep 2")
        spin_check(".Lqs", 10)
        e.label(".Lqs_ok")
        e("s_mov_b32 s80, 0")
        e("v_readfirstlane_b32 s81, v36")
        e("v_add_u32 v14, v14, v39")
        stamp(2)
        for i in range(12):
            for t in range(4):
                q = QR[i // 4] + i % 4
                if i == 0:
                    e(f"v_dot2_f32_bf16 v{S0 + t}, v{K0 + 12 * t + i}, v{q}, 0")
                else:
                    e(f"v_dot2_f32_bf16 v{S0 + t}, v{K0 + 12 * t + i}, v{q}, v{S0 + t}")
        nonce_regs()

    def chunkB():
        for pat in P8:
            for t in range(4):
                e(f"v_add_f32_dpp v{S0 + t}, v{S0 + t}, v{S0 + t} {pat} {DPPM}")
        stamp(3)
        round4(S0, 36)
        for t in range(4):
            e(f"v_mul_f32 v{S0 + t}, s70, v{S0 + t}")
        round4(S0, 36)
        e(f"v_max3_f32 v{MX}, v{S0}, v{S0 + 1}, v{S0 + 2}")
        e(f"v_max_f32 v{MX}, v{MX}, v{S0 + 3}")
        e(f"v_max_f32_dpp v{MX}, v{MX}, v{MX} row_ror:8 {DPPM}")
        rows4(MX, "v_max_f32")
        e(f"v_min_u32 v13, -2, v{MX}")
        e(f"ds_write_b32 v17, v13 offset:{MSL}")

    def chunkC():
        for t in range(4):
            e(f"v_sub_f32 v{S0 + t}, v{S0 + t}, v{MX}")
        for t in range(4):
            e(f"v_mul_f32 v{S0 + t}, s67, v{S0 + t}")
        for t in range(4):
            e(f"v_exp_f32 v{S0 + t}, v{S0 + t}")
        e(f"v_add_f32 v13, v{S0}, v{S0 + 1}")
        e(f"v_add_f32 v13, v13, v{S0 + 2}")
        e(f"v_add_f32 v13, v13, v{S0 + 3}")
        for t in range(4):
            e(f"v_cvt_pk_bf16_f32 v{36 + t}, v{S0 + t}, v{S0 + t}")
        e(f"v_add_f32_dpp v13, v13, v13 row_ror:8 {DPPM}")
        rows4(13, "v_add_f32")
        e(f"v_min_u32 v13, -2, v13")
        e(f"ds_write_b32 v17, v13 offset:{LSL}")
        for t in range(4):
            buildA(36 + t, AP + 4 * t)
        stamp(4)

    def wo_load(a):
        r = WO + 4 * a
        e(f"buffer_load_dwordx4 v[{r}:{r + 3}], v6, s[{SO}:{SO + 3}], {'s66' if a >= 3 else '0'} offen offset:{1280 * (a % 3)}{POL}")

    kv = [("k", m) for m in range(12)] + [("v", m) for m in range(12)]
    if wo_mode == 0:
        seq = kv
        win = [TH] * 24
    elif wo_mode == 1:
        seq = kv[:12] + [("w", a) for a in range(6)] + kv[12:]
        win = [TH] * 12 + [TH + 1] + [TW] * 6 + [TH + 1] + [TH] * 10
    elif wo_mode == 2:
        seq = []
        for i in range(6):
            seq += kv[3 + 2 * i - 3 + 3: 3 + 2 * i + 2] if False else []
        seq = kv[:4]
        for i in range(6):
            seq += [("w", i)] + kv[4 + 2 * i: 6 + 2 * i]
        seq += kv[16:]
        win = [TH] * 5 + [TH + 1] * 17 + [TH] * 8
    pos = {x: n for n, x in enumerate(seq)}
    nq = pos[("v", nqk - 12)]
    landed = -1
    pv_done = 0
    for n, (kind, m) in enumerate(seq):
        side_work(n)
        xbmax = max(int(ch) for ch in f"{xb:08d}")
        if xb and xb0 <= n < xb0 + xbmax:
            lab = e.newlabel("Lk")
            e(f"s_waitcnt vmcnt({win[n]})")
            e(f"s_cmp_gt_u32 s72, {n - xb0}")
            e(f"s_cbranch_scc1 {lab}")
            e(f"s_waitcnt vmcnt({win[n] - 1})")
            e.label(lab)
            landed = max(landed, n - win[n] - 1)
        elif n >= win[n]:
            e(f"s_waitcnt vmcnt({win[n] - 1})")
            landed = max(landed, n - win[n])
        if kind == "w":
            wo_load(m)
        else:
            S, R0 = (SK, K0) if kind == "k" else (SV, V0)
            r = R0 + 4 * m
            e(f"buffer_load_dwordx4 v[{r}:{r + 3}], v3, s[{S}:{S + 3}], s{74 + m // 3} offen offset:{128 * (m % 3)}{POL}")
        if floor:
            if n in (6, 12, 18):
                stamp({6: 2, 12: 3, 18: 4}[n])
            continue
        if n == nq:
            assert landed >= pos[("k", 11)]
            chunkA()
        if n == nq + 1:
            chunkB()
        if n == nq + 2:
            chunkC()
        if n > nq + 2 or n == len(seq) - 1:
            while pv_done < 12 and pos[("v", pv_done)] <= landed:
                mfma(O + 4 * (pv_done % 3), AP + 4 * (pv_done // 3), V0 + 4 * pv_done, pv_done < 3)
                pv_done += 1
    NL = 6 if wo_mode == 0 else 0
    if wo_mode:
        wo_wait = TH
    stamp(1)
    if vrv:
        e("v_mov_b32 v13, 1")
        e("s_mov_b64 exec, 1")
        e(f"ds_add_u32 v18, v13 offset:{VCN}")
        e("s_mov_b64 exec, -1")
        e.label(".Lvr")
        e(f"ds_read_b32 v13, v18 offset:{VCN}")
        e("s_waitcnt lgkmcnt(0)")
        e(f"v_cmp_le_i32 vcc, {vrv - 1}, v13")
        e("s_cbranch_vccnz .Lvr_ok")
        e("s_sleep 1")
        spin_check(".Lvr", 10)
        e.label(".Lvr_ok")
        e("s_mov_b32 s80, 0")
    if wo_wait < TH:
        if not floor:
            while pv_done < 12 - wo_wait:
                e(f"s_waitcnt vmcnt({11 - pv_done})")
                if pv_done == 11 - wo_wait:
                    break
                mfma(O + 4 * (pv_done % 3), AP + 4 * (pv_done // 3), V0 + 4 * pv_done, pv_done < 3)
                pv_done += 1
        else:
            e(f"s_waitcnt vmcnt({wo_wait})")
    for qq in range(NL):
        wo_load(qq)
    if floor:
        e(f"s_waitcnt vmcnt({NL})")
        stamp(5)
        e("s_waitcnt vmcnt(0)")
        stamp(6)
        stamps_flush(7)
        e("s_endpgm")
    while pv_done < 12:
        e(f"s_waitcnt vmcnt({11 + NL - pv_done})")
        mfma(O + 4 * (pv_done % 3), AP + 4 * (pv_done // 3), V0 + 4 * pv_done, pv_done < 3)
        pv_done += 1
    e("s_mov_b64 exec, s[78:79]")
    for r3 in range(3):
        e(f"ds_write_b128 v16, v[{O + 4 * r3}:{O + 4 * r3 + 3}] offset:{OPART + 256 * r3}")
    e("s_mov_b64 exec, -1")
    stamp(5)
    e("s_waitcnt lgkmcnt(0)")
    e("s_barrier")
    if od:
        e(f"s_sleep {od}")
    e.label(".Log")
    e(f"buffer_load_dwordx3 v[64:66], v14, {WSR}, s69 offen sc1")
    e("s_waitcnt vmcnt(0)")
    tags_ok([(64 + k, NS[k]) for k in range(3)], 72, ".Log_ok")
    if osl:
        e(f"s_sleep {osl}")
    spin_check(".Log")
    e.label(".Log_ok")
    stamp(6)
    untag([64, 65, 66])
    for pat in P8:
        for r in range(3):
            e(f"v_add_f32_dpp v{64 + r}, v{64 + r}, v{64 + r} {pat} {DPPM}")
    for r in range(3):
        e(f"v_cvt_pk_bf16_f32 v{64 + r}, v{64 + r}, 0")
    Y = 72
    buildA(64, 88)
    for r in range(3):
        e(f"v_mov_b32_dpp v{68 + r}, v{64 + r} row_ror:8 {DPPM}")
    src = [64, 65, 66, 68, 69, 70]
    for qq in range(6):
        if qq < 5:
            buildA(src[qq + 1], 92 + 4 * qq)
        mfma(Y, 88 + 4 * qq, WO + 4 * qq, qq == 0)
    e("s_mov_b64 exec, 0x03ff03ff")
    e(f"ds_write_b128 v19, v[{Y}:{Y + 3}] offset:{YPART}")
    e("s_waitcnt lgkmcnt(0)")
    e("s_barrier")
    stamp(7)
    stamps_flush(8)
    e.label(".Lend")
    e("s_endpgm")

    e.raw('.section .rodata,"a"')
    e.raw(".p2align 6")
    e.raw(f".amdhsa_kernel {NAME}_kernel")
    e.raw("  .amdhsa_next_free_vgpr 168")
    e.raw("  .amdhsa_next_free_sgpr 102")
    e.raw("  .amdhsa_accum_offset 168")
    e.raw("  .amdhsa_group_segment_fixed_size 0")
    e.raw("  .amdhsa_kernarg_size 96")
    e.raw("  .amdhsa_user_sgpr_count 2")
    e.raw("  .amdhsa_user_sgpr_kernarg_segment_ptr 1")
    e.raw("  .amdhsa_system_sgpr_workgroup_id_x 1")
    e.raw("  .amdhsa_float_denorm_mode_32 3")
    e.raw(".end_amdhsa_kernel")
    return e.text()


if __name__ == "__main__":
    import argparse, inspect
    ap = argparse.ArgumentParser()
    ap.add_argument("-o", default=f"cdna_kernels/{NAME}.s")
    sig = inspect.signature(gen)
    for nm, p in sig.parameters.items():
        if isinstance(p.default, bool):
            ap.add_argument("--" + nm, action="store_true")
        else:
            ap.add_argument("--" + nm, type=int, default=p.default)
    a = vars(ap.parse_args())
    o = a.pop("o")
    open(o, "w").write(gen(**a))
    print("wrote", o)
```

```python
import sys, struct
from asmlib import Emitter

NAME = "recurrent_scan__sliding_block_cached__glu_gated_bilinear__decode"

def f2u(f):
    return struct.unpack("<I", struct.pack("<f", f))[0]

QP = 0x0
QID = 0x30000
GID = 0x38000
GU = 0x40000
OP = 0x80000
BOFF = 0x100000
ZP = 0x200000
YP = 0x220000
WS_USED = 0x240000
STAMP = 0x300000
QBUF = 0
MSL = 384
LSL = 416
QFL = 448
VCN = 464
HBUF = 480
OPART = 1024
YPART = OPART + 16 * 768
LDS_BYTES = YPART + 8 * 384

SPIN_MAX = 200000
FALLBACK = 64
LOG2E = 1.4426950408889634


def gen(stamps=False, TH=3, floor=False, wo_late=6, badmap=0, qs0=30, qs1=16, gs0=60, mss=2, zs=16, rot=10100, spank=0, yb0=0, yb1=0, wo_pos=1, ylay=0, touch=0, nearly=1, kvpre=2, hpre=10, mlwarm=0, nqk=16, wo_wait=2, wo_mode=0, TW=5, osl=0, msl=0, ysl=0, vrv=0, od=6, mlp=4, xb=0, xb0=6, st0=0, pp=0, ppy=0):
    e = Emitter()
    POL = " nt"
    hdr = open("cdna_kernels/%s.s.ref" % NAME).read().split("; Override launch")[0]
    e.raw(hdr.rstrip("\n"))
    e.raw(f"; @launch grid=(256,1,1) block=(768,1,1) lds={LDS_BYTES}")
    e.raw('.amdgcn_target "amdgcn-amd-amdhsa--gfx950"')
    e.raw(".text")
    e.raw(f".globl {NAME}_kernel")
    e.raw(".p2align 8")
    e.raw(f".type {NAME}_kernel,@function")
    e.raw(f"{NAME}_kernel:")

    def stamp(i):
        if stamps:
            e(f"s_memrealtime s[{84 + 2 * i}:{85 + 2 * i}]")

    def stamps_flush(n):
        if not stamps:
            return
        e("s_waitcnt lgkmcnt(0)")
        e("s_mul_i32 s7, s6, 12")
        e("s_add_u32 s7, s7, s3")
        e("s_lshl_b32 s7, s7, 6")
        e(f"s_add_u32 s7, s7, {STAMP}")
        e("s_add_u32 s8, s38, s7")
        e("s_addc_u32 s9, s39, 0")
        e("s_mov_b32 s10, 64")
        e("s_mov_b32 s11, 0x20000")
        e("s_mov_b64 exec, 1")
        e("v_mov_b32 v1, 0")
        for i in range(n):
            e(f"v_mov_b32 v2, s{84 + 2 * i}")
            e(f"buffer_store_dword v2, v1, s[8:11], 0 offen offset:{4 * i}")
        e("s_waitcnt vmcnt(0)")

    def srd(d, blo, off, nbytes):
        if off is None:
            e(f"s_mov_b32 s{d}, s{blo}")
            e(f"s_mov_b32 s{d + 1}, s{blo + 1}")
        else:
            e(f"s_add_u32 s{d}, s{blo}, {off}")
            e(f"s_addc_u32 s{d + 1}, s{blo + 1}, 0")
        e(f"s_mov_b32 s{d + 2}, {nbytes}")
        e(f"s_mov_b32 s{d + 3}, 0x20000")

    def spin_check(lbl_retry, mult=1):
        e("s_add_u32 s80, s80, 1")
        e(f"s_cmp_lt_u32 s80, {SPIN_MAX * mult}")
        e(f"s_cbranch_scc1 {lbl_retry}")
        e("s_branch .Lend")

    def fallback_retry(tg, lbl_retry, vaddrs, storeB):
        e("s_add_u32 s80, s80, 1")
        e(f"s_cmp_lt_u32 s80, {FALLBACK}")
        e(f"s_cbranch_scc1 {lbl_retry}")
        e("s_cmp_lg_u32 s82, 0")
        e(f"s_cbranch_scc1 .Lfb_{tg}")
        storeB()
        e("s_mov_b32 s82, 1")
        e.label(f".Lfb_{tg}")
        for v in vaddrs:
            e(f"v_xor_b32 v{v}, 0x{BOFF:x}, v{v}")
        e(f"s_cmp_lt_u32 s80, {SPIN_MAX}")
        e(f"s_cbranch_scc1 {lbl_retry}")
        e("s_branch .Lend")

    def xcc_check(tg, vid, tmp, storeB):
        e("s_mov_b32 s80, 0")
        e("s_mov_b32 s83, 0")
        e(f"v_lshrrev_b32 v{tmp}, 8, v{vid}")
        e(f"v_cmp_ne_u32 vcc, s65, v{tmp}")
        e(f"s_cbranch_vccz .Lxc_{tg}")
        e(f"s_mov_b32 s83, 0x{BOFF:x}")
        e("s_cmp_lg_u32 s82, 0")
        e(f"s_cbranch_scc1 .Lxc_{tg}")
        storeB()
        e.label(f".Lxc_{tg}")

    NS = ["s81", "s61", "s62", "s63"]
    VFF = 31

    def nonce_regs():
        for k in range(1, 4):
            e(f"s_lshr_b32 {NS[k]}, s81, {8 * k}")

    def tag(dst, src, n):
        e(f"v_bfi_b32 v{dst}, v{VFF}, {n}, v{src}")

    def tags_ok(pairs, acc, ok_label):
        for i, (w, n) in enumerate(pairs):
            if i == 0:
                e(f"v_xor_b32 v{acc}, {n}, v{w}")
            else:
                e(f"v_bitop3_b32 v{acc}, v{acc}, v{w}, {n} bitop3:0xf6")
        e(f"v_and_b32 v{acc}, v{VFF}, v{acc}")
        e(f"v_cmp_ne_u32 vcc, 0, v{acc}")
        e(f"s_cbranch_vccz {ok_label}", safe_branch=True)

    def untag(regs):
        for r in regs:
            e(f"v_and_b32 v{r}, 0xffffff00, v{r}")

    SEL = 32

    def selectors(t0, t1, t2):
        e(f"v_bfe_u32 v{t0}, v0, 3, 1")
        e(f"v_mul_u32_u24 v{t0}, 0x202, v{t0}")
        e(f"v_add_u32 v{t0}, 0x100, v{t0}")
        e(f"v_and_b32 v{t1}, 1, v0")
        e(f"v_lshlrev_b32 v{t1}, 4, v{t1}")
        e(f"v_lshlrev_b32 v{t0}, v{t1}, v{t0}")
        e(f"v_mov_b32 v{t2}, 0x0c0c0000")
        e(f"v_lshrrev_b32 v{t2}, v{t1}, v{t2}")
        e(f"v_or_b32 v{t0}, v{t0}, v{t2}")
        e(f"v_bfe_u32 v{t1}, v0, 1, 2")
        e(f"v_mov_b32 v{t2}, 0x0c0c0c0c")
        for k in range(4):
            e(f"v_cmp_eq_u32 vcc, {k}, v{t1}")
            e(f"v_cndmask_b32 v{SEL + k}, v{t2}, v{t0}, vcc")

    DPPM = "row_mask:0xf bank_mask:0xf"
    P8 = ("quad_perm:[1,0,3,2]", "quad_perm:[2,3,0,1]", "row_half_mirror")
    P16 = P8 + ("row_mirror",)

    def row_sum(v):
        for pat in P16:
            e(f"v_add_f32_dpp v{v}, v{v}, v{v} {pat} {DPPM}")

    def rows4(v, op):
        for i in range(4):
            e(f"v_readlane_b32 s{12 + i}, v{v}, {16 * i}")
        e(f"v_mov_b32 v{v}, s12")
        for i in range(1, 4):
            e(f"{op} v{v}, s{12 + i}, v{v}")

    def bf16r(v, t):
        e(f"v_cvt_pk_bf16_f32 v{t}, v{v}, v{v}")
        e(f"v_lshlrev_b32 v{v}, 16, v{t}")

    def mfma(d, a, b, first):
        e(f"v_mfma_f32_16x16x32_bf16 v[{d}:{d + 3}], v[{a}:{a + 3}], v[{b}:{b + 3}], "
          + ("0" if first else f"v[{d}:{d + 3}]"))

    def rows_sum4(b, t):
        for sw in ("v_permlane16_swap_b32", "v_permlane32_swap_b32"):
            for r in range(4):
                e(f"v_mov_b32 v{t + r}, v{b + r}")
            for r in range(4):
                e(f"{sw} v{b + r}, v{t + r}")
            for r in range(4):
                e(f"v_add_f32 v{b + r}, v{b + r}, v{t + r}")

    def col_sum(b):
        e(f"v_permlane32_swap_b32 v{b}, v{b + 1}")
        e(f"v_permlane32_swap_b32 v{b + 2}, v{b + 3}")
        e(f"v_add_f32 v{b}, v{b}, v{b + 1}")
        e(f"v_add_f32 v{b + 2}, v{b + 2}, v{b + 3}")
        e(f"v_permlane16_swap_b32 v{b}, v{b + 2}")
        e(f"v_add_f32 v{b}, v{b}, v{b + 2}")
        for pat in ("row_ror:2", "row_ror:4", "row_ror:8"):
            e(f"v_add_f32_dpp v{b}, v{b}, v{b} {pat} {DPPM}")

    def round4(b, t):
        e(f"v_cvt_pk_bf16_f32 v{t}, v{b}, v{b + 1}")
        e(f"v_cvt_pk_bf16_f32 v{t + 1}, v{b + 2}, v{b + 3}")
        e(f"v_lshlrev_b32 v{b}, 16, v{t}")
        e(f"v_and_b32 v{b + 1}, 0xffff0000, v{t}")
        e(f"v_lshlrev_b32 v{b + 2}, 16, v{t + 1}")
        e(f"v_and_b32 v{b + 3}, 0xffff0000, v{t + 1}")

    SX, SW, SU, SD, SWS, SDBG = 40, 44, 48, 52, 56, 60
    WSR = f"s[{SWS}:{SWS + 3}]"
    e("s_cmp_ge_u32 s2, 256")
    e("s_cbranch_scc1 .Lend")
    e("s_load_dwordx16 s[16:31], s[0:1], 0")
    e("s_load_dwordx8 s[32:39], s[0:1], 64")
    e("s_memrealtime s[72:73]")
    if stamps:
        for i in range(1, 8):
            e(f"s_mov_b32 s{84 + 2 * i}, 0")
    stamp(0)
    e("v_lshrrev_b32 v1, 6, v0")
    e("v_and_b32 v0, 63, v0")
    e("v_readfirstlane_b32 s3, v1")
    e("s_cmp_ge_u32 s3, 4")
    e("s_cbranch_scc1 .Lkv", safe_branch=True)
    e("s_cmp_eq_u32 s3, 3")
    e("s_cbranch_scc1 .Lffn", safe_branch=True)

    def common():
        if badmap == 2:
            e("s_lshr_b32 s7, s2, 7")
            e("s_xor_b32 s2, s2, s7")
            e("s_lshr_b32 s7, s2, 3")
            e("s_and_b32 s7, s7, 1")
            e("s_xor_b32 s2, s2, s7")
        if badmap == 3:
            e("s_lshr_b32 s7, s2, 6")
            e("s_and_b32 s7, s7, 1")
            e("s_xor_b32 s2, s2, s7")
        e("s_and_b32 s7, s2, 7")
        e("s_lshr_b32 s8, s2, 3")
        e("s_lshr_b32 s9, s8, 3")
        e("s_lshl_b32 s4, s7, 2")
        e("s_add_u32 s4, s4, s9")
        e("s_and_b32 s5, s8, 7")
        if badmap == 1:
            e("s_lshr_b32 s4, s2, 3")
            e("s_and_b32 s5, s2, 7")
        e("s_lshl_b32 s6, s4, 3")
        e("s_add_u32 s6, s6, s5")
        e("s_mov_b32 s80, 0")
        e(f"s_mov_b32 s67, 0x{f2u(LOG2E):08x}")
        e("v_mov_b32 v18, 0")
        e(f"v_mov_b32 v{VFF}, 0xff")
        e("v_lshrrev_b32 v2, 3, v0")
        e("v_and_b32 v4, 7, v0")
        e("v_lshlrev_b32 v4, 4, v4")

    XS, XR = 10, 36
    PP = 20
    A = 36
    DAT = 44

    def helper_common():
        e("s_setprio 3")
        common()
        e("v_lshlrev_b32 v1, 4, v0")
        e("v_lshlrev_b32 v9, 2, v0")
        e("s_getreg_b32 s65, hwreg(HW_REG_XCC_ID, 0, 4)")
        e("s_lshl_b32 s66, s65, 8")
        e("s_mov_b32 s82, 0")

    helper_common()

    def xloads():
        srd(SX, 16, None, 1280)
        e(f"buffer_load_dwordx4 v[{XS}:{XS + 3}], v1, s[{SX}:{SX + 3}], 0 offen")
        e(f"buffer_load_dword v{XS + 4}, v9, s[{SX}:{SX + 3}], 0 offen offset:1024")
        e(f"buffer_load_dwordx4 v[{XR}:{XR + 3}], v3, s[{SX}:{SX + 3}], 0 offen")
        e(f"buffer_load_dword v{XR + 4}, v3, s[{SX}:{SX + 3}], 0 offen offset:16")

    def layernorm(nafter):
        if st0:
            stamp(7)
        e(f"s_waitcnt vmcnt({nafter})")
        if st0:
            stamp(3)
        for i in range(5):
            e(f"v_lshlrev_b32 v{PP + 2 * i}, 16, v{XS + i}")
            e(f"v_and_b32 v{PP + 2 * i + 1}, 0xffff0000, v{XS + i}")
        e(f"v_add_f32 v5, v{PP}, v{PP + 1}")
        for i in range(2, 10):
            e(f"v_add_f32 v5, v5, v{PP + i}")
        row_sum(5)
        rows4(5, "v_add_f32")
        e(f"v_mul_f32 v5, 0x{f2u(1.0 / 640):08x}, v5")
        e(f"v_sub_f32 v6, v{PP}, v5")
        e("v_mul_f32 v7, v6, v6")
        for i in range(1, 10):
            e(f"v_sub_f32 v6, v{PP + i}, v5")
            e("v_fmac_f32 v7, v6, v6")
        row_sum(7)
        rows4(7, "v_add_f32")
        e(f"v_mul_f32 v7, 0x{f2u(1.0 / 640):08x}, v7")
        bf16r(5, 6)
        bf16r(7, 6)
        e(f"v_add_f32 v7, 0x{f2u(1e-5):08x}, v7")
        bf16r(7, 6)
        e("v_sqrt_f32 v7, v7")
        bf16r(7, 6)
        e("v_rcp_f32 v8, v7")
        for i in range(5):
            a, b = 10, 11
            e(f"v_lshlrev_b32 v{a}, 16, v{XR + i}")
            e(f"v_and_b32 v{b}, 0xffff0000, v{XR + i}")
            e(f"v_sub_f32 v{a}, v{a}, v5")
            e(f"v_sub_f32 v{b}, v{b}, v5")
            e(f"v_cvt_pk_bf16_f32 v6, v{a}, v{b}")
            e(f"v_lshlrev_b32 v{a}, 16, v6")
            e(f"v_and_b32 v{b}, 0xffff0000, v6")
            for (x, dst) in ((a, PP + 2 * i), (b, PP + 2 * i + 1)):
                q, r = 12, 13
                e(f"v_mul_f32 v{q}, v{x}, v8")
                e(f"v_fma_f32 v{r}, -v{q}, v7, v{x}")
                e(f"v_fma_f32 v{q}, v{r}, v8, v{q}")
                e(f"v_cvt_pk_bf16_f32 v{dst}, v{q}, v{q}")

    def buildA(src, dst=None):
        dst = A if dst is None else dst
        for k in range(4):
            e(f"v_perm_b32 v{dst + k}, v{src}, v{src}, v{SEL + k}")

    def combine_halves(D, t0, t1):
        for r in range(4):
            e(f"v_mov_b32_dpp v{t0 + r}, v{D + r} row_ror:8 {DPPM}")
        for r in range(4):
            e(f"v_permlane32_swap_b32 v{t0 + r}, v{t1 + r}")
        for r in range(4):
            e(f"v_add_f32 v{D + r}, v{D + r}, v{t1 + r}")

    def nonce_wait(vF, tg):
        e.label(f".Lfl_{tg}")
        e("s_waitcnt vmcnt(0)")
        e(f"v_readfirstlane_b32 s81, v{vF}")
        e("s_cmp_lg_u32 s81, 0")
        e(f"s_cbranch_scc1 .Lfl_{tg}_ok")
        e("s_sleep 2")
        e(f"buffer_load_dword v{vF}, v18, s[{SDBG}:{SDBG + 3}], 0 offen sc1")
        spin_check(f".Lfl_{tg}")
        e.label(f".Lfl_{tg}_ok")
        e("s_mov_b32 s80, 0")
        nonce_regs()

    e("v_mul_u32_u24 v3, 20, v2")
    e("s_mul_i32 s7, s5, 160")
    e("v_add_u32 v3, s7, v3")
    e("s_mul_i32 s7, s5, 983040")
    e("s_mul_i32 s8, s4, 384")
    e("s_add_u32 s7, s7, s8")
    e("s_lshl_b32 s8, s3, 7")
    e("s_add_u32 s7, s7, s8")
    e("s_mov_b32 s8, 122880")
    e("v_mul_lo_u32 v5, v2, s8")
    e("v_add_u32 v5, v5, v4")
    if st0:
        stamp(5)
    e("s_or_b32 s9, s2, s3")
    e("s_waitcnt lgkmcnt(0)")
    if st0:
        stamp(6)
    e("s_cbranch_scc1 .Lnononce")
    srd(SDBG, 36, None, 256)
    e("s_bfe_u32 s10, s72, 0x70004")
    e("s_bfe_u32 s8, s72, 0x7000b")
    e("s_lshl_b32 s8, s8, 8")
    e("s_or_b32 s10, s10, s8")
    e("s_bfe_u32 s8, s72, 0x70012")
    e("s_lshl_b32 s8, s8, 16")
    e("s_or_b32 s10, s10, s8")
    e("s_bfe_u32 s8, s72, 0x60019")
    e("s_lshl_b32 s8, s8, 24")
    e("s_or_b32 s10, s10, s8")
    e("s_or_b32 s10, s10, 0x80808080")
    e("v_mov_b32 v6, s10")
    e("s_mov_b64 exec, 1")
    e(f"buffer_store_dword v6, v18, s[{SDBG}:{SDBG + 3}], 0 offen sc1")
    e("s_mov_b64 exec, -1")
    e.label(".Lnononce")
    xloads()
    srd(SW, 22, "s7", 79 * 12288 + 128)
    e("s_mov_b32 s7, 0")
    for t in range(10):
        e(f"buffer_load_dwordx4 v[{DAT + 4 * t}:{DAT + 4 * t + 3}], v5, s[{SW}:{SW + 3}], s7 offen{POL}")
        if t < 9:
            e("s_add_u32 s7, s7, 12288")
        if t == hpre - 1:
            e("s_barrier")
    srd(SWS, 38, None, WS_USED)
    srd(SDBG, 36, None, 256)
    e("s_cmp_lg_u32 s3, 0")
    e("s_cbranch_scc1 .Lnozf")
    for r in range(4):
        e(f"v_mov_b32 v{20 + r}, 0")
    e("s_lshl_b32 s7, s6, 10")
    e(f"s_add_u32 s7, s7, {OP}")
    e(f"buffer_store_dwordx4 v[20:23], v1, {WSR}, s7 offen")
    e.label(".Lnozf")
    if nearly:
        e(f"buffer_load_dword v19, v18, s[{SDBG}:{SDBG + 3}], 0 offen sc1")
    selectors(5, 6, 7)
    layernorm(10 + nearly)
    if not nearly:
        e(f"buffer_load_dword v19, v18, s[{SDBG}:{SDBG + 3}], 0 offen sc1")
    stamp(1)
    D = 84
    for t in range(10):
        buildA(PP + t)
        e(f"s_waitcnt vmcnt({10 - t})")
        mfma(D, A, DAT + 4 * t, t == 0)
    stamp(2)
    if floor:
        stamps_flush(8)
        e("s_endpgm")
    combine_halves(D, 88, 92)
    e("v_and_b32 v17, 15, v0")
    e("v_lshlrev_b32 v17, 5, v17")
    e("v_lshrrev_b32 v6, 4, v0")
    e("v_lshl_add_u32 v17, v6, 4, v17")
    e("s_lshl_b32 s10, s3, 16")
    e("s_lshl_b32 s7, s6, 8")
    e("s_add_u32 s10, s10, s7")
    e(f"s_add_u32 s11, s10, {BOFF}")
    e("s_lshl_b32 s9, s4, 9")
    e("s_lshl_b32 s7, s3, 7")
    e("s_add_u32 s9, s9, s7")
    e(f"s_add_u32 s9, s9, {QID}")
    e("s_lshl_b32 s7, s5, 4")
    e("s_add_u32 s7, s7, s9")
    e("s_sub_u32 s7, s7, s10")
    e("v_writelane_b32 v17, s7, 8")
    for r in range(4):
        e(f"v_writelane_b32 v{D + r}, s66, 8")
    e("s_lshl_b32 s8, s3, 16")
    e("s_lshl_b32 s7, s4, 11")
    e("s_add_u32 s8, s8, s7")
    e("v_mov_b32 v16, v4")
    if mlwarm:
        e("s_lshl_b32 s7, s3, 7")
        e("s_sub_u32 s7, 384, s7")
        e("v_writelane_b32 v16, s7, 8")
    nonce_wait(19, "q")
    for r in range(4):
        tag(D + r, D + r, NS[r])
    stamp(3)
    e("s_mov_b64 exec, 0x00ff01ff")
    e(f"buffer_store_dwordx4 v[{D}:{D + 3}], v17, {WSR}, s10 offen")
    e("s_mov_b64 exec, -1")
    def q_storeB():
        e("s_mov_b64 exec, 0x00ff01ff")
        e(f"buffer_store_dwordx4 v[{D}:{D + 3}], v17, {WSR}, s11 offen sc1")
        e("s_mov_b64 exec, -1")
    e("v_mov_b32 v15, v1")
    if qs0:
        e(f"s_sleep {qs0}")
    e.label(".Lqg")
    e(f"buffer_load_dwordx4 v[{DAT}:{DAT + 3}], v15, {WSR}, s8 offen sc1")
    e(f"buffer_load_dwordx4 v[{DAT + 4}:{DAT + 7}], v15, {WSR}, s8 offen offset:1024 sc1")
    e(f"s_mov_b64 exec, {'0x1ff' if mlwarm else '0xff'}")
    e(f"buffer_load_dwordx4 v[{DAT + 8}:{DAT + 11}], v16, {WSR}, s9 offen sc1")
    e("s_mov_b64 exec, 0xff")
    e("s_waitcnt vmcnt(0)")
    tags_ok([(DAT + 8 + k, NS[k]) for k in range(4)], 5, ".Lqg_id")
    e("s_mov_b64 exec, -1")
    e("s_branch .Lqg_re")
    e.label(".Lqg_id")
    e("s_mov_b64 exec, -1")
    tags_ok([(DAT + k, NS[k % 4]) for k in range(8)], 5, ".Lqg_ok")
    e.label(".Lqg_re")
    e(f"s_sleep {qs1}")
    fallback_retry("q", ".Lqg", [15, 16], q_storeB)
    e.label(".Lqg_ok")
    e("s_mov_b64 exec, 0xff")
    xcc_check("q", DAT + 8, 5, q_storeB)
    e("s_mov_b64 exec, -1")
    untag(range(DAT, DAT + 8))
    for r in range(4):
        e(f"v_add_f32 v{DAT + r}, v{DAT + r}, v{DAT + 4 + r}")
    rows_sum4(DAT, DAT + 4)
    e(f"v_cvt_pk_bf16_f32 v6, v{DAT}, v{DAT + 1}")
    e(f"v_cvt_pk_bf16_f32 v7, v{DAT + 2}, v{DAT + 3}")
    e("s_lshl_b32 s7, s3, 7")
    e("v_and_b32 v5, 15, v0")
    e("v_lshlrev_b32 v5, 3, v5")
    e("v_add_u32 v5, s7, v5")
    e(f"ds_write_b64 v5, v[6:7] offset:{QBUF}")
    e("v_mov_b32 v5, s83")
    e(f"ds_write_b32 v18, v5 offset:{QFL + 12}")
    e("s_lshl_b32 s7, s3, 2")
    e("v_mov_b32 v6, s7")
    e("v_mov_b32 v5, s81")
    e("s_waitcnt lgkmcnt(0)")
    e(f"ds_write_b32 v6, v5 offset:{QFL}")
    stamp(4)

    SO_ = 48
    e("s_lshl_b32 s75, s4, 13")
    e("s_lshl_b32 s7, s5, 4")
    e("s_add_u32 s75, s75, s7")
    e(f"s_add_u32 s75, s75, {OP}")
    e("s_add_u32 s75, s75, s83")
    e("s_lshl_b32 s76, s4, 9")
    e("s_add_u32 s76, s76, s7")
    e(f"s_add_u32 s76, s76, {QID + 384}")
    e("s_add_u32 s76, s76, s83")
    e("s_lshl_b32 s7, s3, 6")
    e("v_add_u32 v24, s7, v0")
    e("v_mul_u32_u24 v22, 0x5556, v24")
    e("v_lshrrev_b32 v22, 16, v22")
    e("v_mul_u32_u24 v21, 3, v22")
    e("v_sub_u32 v21, v24, v21")
    e("v_lshlrev_b32 v22, 7, v22")
    e("v_lshl_add_u32 v22, v21, 2, v22")
    e("v_lshlrev_b32 v21, 3, v21")
    e("v_lshrrev_b32 v30, v21, s81")
    e("v_lshlrev_b32 v24, 2, v24")
    e("s_mov_b32 s70, 0")
    e("s_cmp_lg_u32 s3, 0")
    e("s_cbranch_scc1 .Lnoz")
    e("s_and_b32 s74, s6, 31")
    e("s_cmp_ge_u32 s74, 10")
    e("s_cbranch_scc1 .Lnoz")
    e("s_mov_b32 s70, 1")
    e("s_lshr_b32 s7, s6, 5")
    e("s_mul_i32 s8, s7, 160")
    e("s_lshl_b32 s9, s74, 4")
    e("s_add_u32 s8, s8, s9")
    e("v_and_b32 v5, 1, v0")
    e("v_lshlrev_b32 v25, 3, v5")
    e("v_bfe_u32 v6, v0, 4, 1")
    e("v_lshl_add_u32 v25, v6, 2, v25")
    e("v_lshrrev_b32 v6, 5, v0")
    e("v_lshl_add_u32 v25, v6, 1, v25")
    e("v_add_u32 v25, s8, v25")
    e("s_lshl_b32 s9, s8, 6")
    e(f"s_add_u32 s73, s9, {ZP}")
    if ylay:
        e(f"s_add_u32 s71, s9, {YP}")
        e("v_mov_b32 v28, v1")
    else:
        e("v_lshrrev_b32 v28, 1, v0")
        e("v_mul_u32_u24 v28, 3072, v28")
        e("v_lshl_add_u32 v28, v5, 4, v28")
        e("s_mul_i32 s71, s7, 384")
        e("s_lshl_b32 s9, s74, 5")
        e("s_add_u32 s71, s71, s9")
        e(f"s_add_u32 s71, s71, {YP}")
    e("s_mov_b32 s78, 0x00030003")
    e("s_mov_b32 s79, 0x00030003")
    srd(SO_, 34, None, 1280)
    e.label(".Lnoz")
    e("s_cmp_eq_u32 s83, 0")
    e("s_cbranch_scc1 .Lnozb")
    e("s_cmp_lg_u32 s3, 2")
    e("s_cbranch_scc1 .Lnozb")
    for r in range(4):
        e(f"v_mov_b32 v{64 + r}, 0")
    e("v_lshlrev_b32 v12, 7, v0")
    e(f"buffer_store_dwordx4 v[64:67], v12, {WSR}, s75 offen sc1")
    e("s_waitcnt vmcnt(0)")
    e.label(".Lnozb")
    stamp(5)
    e.label(".Lms")
    for i in range(4):
        e(f"ds_read_b128 v[{40 + 4 * i}:{43 + 4 * i}], v18 offset:{MSL + 16 * i}")
    e("s_waitcnt lgkmcnt(0)")
    e("v_max3_u32 v19, v40, v41, v42")
    for i in range(6):
        e(f"v_max3_u32 v19, v19, v{43 + 2 * i}, v{44 + 2 * i}")
    e("v_max_u32 v19, v19, v55")
    e("v_cmp_eq_u32 vcc, -1, v19")
    e("s_cbranch_vccz .Lms_ok")
    e(f"s_sleep {mss}")
    spin_check(".Lms", 10)
    e.label(".Lms_ok")
    e("s_mov_b32 s80, 0")
    MX = 10
    e(f"v_max3_f32 v{MX}, v40, v41, v42")
    e(f"v_max3_f32 v{MX}, v{MX}, v43, v44")
    e(f"v_max3_f32 v{MX}, v{MX}, v45, v46")
    e(f"v_max_f32 v{MX}, v{MX}, v47")
    for i in range(8):
        e(f"v_sub_f32 v{40 + i}, v{40 + i}, v{MX}")
    for i in range(8):
        e(f"v_mul_f32 v{40 + i}, s67, v{40 + i}")
    for i in range(8):
        e(f"v_exp_f32 v{40 + i}, v{40 + i}")
    e("s_cmp_lg_u32 s3, 2")
    e("s_cbranch_scc1 .Lnol")
    e("v_mul_f32 v11, v40, v48")
    for i in range(1, 8):
        e(f"v_fmac_f32 v11, v{40 + i}, v{48 + i}")
    tag(56, 10, NS[0])
    tag(57, 11, NS[1])
    tag(58, 10, NS[2])
    tag(59, 11, NS[3])
    e("s_mov_b64 exec, 1")
    e("s_cmp_lg_u32 s83, 0")
    e("s_cbranch_scc1 .Lml_b")
    e(f"buffer_store_dwordx4 v[56:59], v18, {WSR}, s76 offen")
    e("s_branch .Lml_e")
    e.label(".Lml_b")
    e(f"buffer_store_dwordx4 v[56:59], v18, {WSR}, s76 offen sc1")
    e.label(".Lml_e")
    e("s_lshl_b32 s7, s5, 4")
    e("s_sub_u32 s76, s76, s7")
    e("s_mov_b64 exec, 0xff")
    e.label(".Lml")
    e(f"buffer_load_dwordx4 v[60:63], v4, {WSR}, s76 offen sc1")
    e("s_waitcnt vmcnt(0)")
    tags_ok([(60 + k, NS[k]) for k in range(4)], 5, ".Lml_ok")
    e(f"s_sleep {mlp}")
    spin_check(".Lml")
    e.label(".Lml_ok")
    e("s_mov_b32 s80, 0")
    untag([60, 61])
    e("v_mov_b32 v62, v60")
    for pat in P8:
        e(f"v_max_f32_dpp v62, v62, v62 {pat} {DPPM}")
    e("v_sub_f32 v60, v60, v62")
    e(f"v_sub_f32 v62, v{MX}, v62")
    e("v_mul_f32 v60, s67, v60")
    e("v_mul_f32 v62, s67, v62")
    e("v_exp_f32 v60, v60")
    e("v_exp_f32 v62, v62")
    e("v_mul_f32 v60, v60, v61")
    for pat in P8:
        e(f"v_add_f32_dpp v60, v60, v60 {pat} {DPPM}")
    e("v_rcp_f32 v60, v60")
    e("v_mul_f32 v60, v60, v62")
    e(f"ds_write_b32 v18, v60 offset:{VCN + 4}")
    e("s_mov_b64 exec, -1")
    e.label(".Lnol")
    e("s_cmp_eq_u32 s70, 0")
    e("s_cbranch_scc1 .Lnozl")
    e(f"buffer_load_ushort v26, v25, s[{SX}:{SX + 3}], 0 offen")
    e(f"buffer_load_dwordx4 v[100:103], v1, {WSR}, s73 offen sc1")
    e.label(".Lnozl")
    if ylay:
        e("s_mul_i32 s77, s5, 10240")
        e("s_lshl_b32 s7, s4, 5")
        e("s_add_u32 s77, s77, s7")
        e(f"s_add_u32 s77, s77, {YP}")
        e("v_lshrrev_b32 v23, 1, v0")
        e("v_lshlrev_b32 v23, 10, v23")
        e("v_and_b32 v5, 1, v0")
        e("v_lshl_add_u32 v23, v5, 4, v23")
    else:
        e("s_mul_i32 s77, s6, 384")
        e(f"s_add_u32 s77, s77, {YP}")
        e("v_mov_b32 v23, v1")
    e("s_cmp_lg_u32 s83, 0")
    e("s_waitcnt lgkmcnt(0)")
    e("s_barrier")
    e(f"ds_read_b32 v81, v18 offset:{VCN + 4}")
    for p in range(8):
        e(f"ds_read2st64_b32 v[{64 + 2 * p}:{65 + 2 * p}], v24 offset0:{OPART // 256 + 6 * p} offset1:{OPART // 256 + 6 * p + 3}")
    for p in range(8):
        e(f"s_waitcnt lgkmcnt({7 - p})")
        e(f"v_add_f32 v{64 + 2 * p}, v{64 + 2 * p}, v{65 + 2 * p}")
        if p < 2:
            e(f"v_mul_f32 v{82 + p}, v{40 + p}, v{64 + 2 * p}")
        else:
            e(f"v_fmac_f32 v{82 + p % 2}, v{40 + p}, v{64 + 2 * p}")
    e("v_add_f32 v80, v82, v83")
    e("v_mul_f32 v80, v80, v81")
    tag(80, 80, "v30")
    e("s_cbranch_scc1 .Lo_b", safe_branch=True)
    e(f"buffer_store_dword v80, v22, {WSR}, s75 offen")
    e.label(".Lo_e")
    stamp(6)
    e("s_cmp_eq_u32 s3, 1")
    e("s_cbranch_scc1 .Lyred")
    e("s_cmp_eq_u32 s70, 0")
    e("s_cbranch_scc1 .Lfin_stamp")
    e("s_waitcnt vmcnt(1)")
    tags_ok([(100 + r, NS[r]) for r in range(4)], 5, ".Lzg_ok")
    e("s_barrier")
    e("s_mov_b32 s70, 2")
    e.label(".Lzg")
    e(f"buffer_load_dwordx4 v[100:103], v1, {WSR}, s73 offen sc1")
    e("s_waitcnt vmcnt(0)")
    tags_ok([(100 + r, NS[r]) for r in range(4)], 5, ".Lzg_ok")
    spin_check(".Lzg")
    e.label(".Lzg_ok")
    e("s_mov_b32 s80, 0")
    untag(range(100, 104))
    col_sum(100)
    bf16r(100, 104)
    e("v_mul_f32 v104, s67, v100")
    e("v_exp_f32 v104, -v104")
    e("v_add_f32 v104, 1.0, v104")
    e("v_rcp_f32 v105, v104")
    e("v_mul_f32 v106, v100, v105")
    e("v_fma_f32 v107, -v106, v104, v100")
    e("v_fma_f32 v107, v107, v105, v106")
    e("v_cmp_o_f32 vcc, v107, v107")
    e("v_cndmask_b32 v100, v106, v107, vcc")
    bf16r(100, 104)
    e("v_lshlrev_b32 v108, 16, v26")
    e("s_cmp_eq_u32 s70, 2")
    e("s_cbranch_scc1 .Lyg")
    e("s_barrier")
    e.label(".Lyg")
    if ppy:
        e(f"buffer_load_dwordx4 v[92:95], v28, {WSR}, s71 offen sc1")
        e(f"s_sleep {ppy}")
        e.label(".Lyg1")
        e(f"buffer_load_dwordx4 v[96:99], v28, {WSR}, s71 offen sc1")
        e("s_waitcnt vmcnt(1)")
        tags_ok([(92 + r, NS[r]) for r in range(4)], 5, ".Lyg_ok")
        e(f"buffer_load_dwordx4 v[92:95], v28, {WSR}, s71 offen sc1")
        e("s_waitcnt vmcnt(1)")
        tags_ok([(96 + r, NS[r]) for r in range(4)], 5, ".Lyg_okb")
        spin_check(".Lyg1")
        e.label(".Lyg_okb")
        for k in range(4):
            e(f"v_and_b32 v{84 + k}, 0xffffff00, v{96 + k}")
        e("s_branch .Lyg_c")
    else:
        e(f"buffer_load_dwordx4 v[92:95], v28, {WSR}, s71 offen sc1")
        e("s_waitcnt vmcnt(0)")
        tags_ok([(92 + r, NS[r]) for r in range(4)], 5, ".Lyg_ok")
        spin_check(".Lyg")
    e.label(".Lyg_ok")
    for k in range(4):
        e(f"v_and_b32 v{84 + k}, 0xffffff00, v{92 + k}")
    e.label(".Lyg_c")
    col_sum(84)
    bf16r(84, 88)
    e("v_mul_f32 v84, v84, v100")
    bf16r(84, 88)
    e("v_add_f32 v84, v84, v108")
    e("v_cvt_pk_bf16_f32 v88, v84, v84")
    e("s_mov_b64 exec, s[78:79]")
    e(f"buffer_store_short v88, v25, s[{SO_}:{SO_ + 3}], 0 offen")
    if spank:
        e("s_cmp_lg_u32 s2, 0")
        e("s_cbranch_scc1 .Lfin_stamp")
        e("s_memrealtime s[8:9]")
        e("s_waitcnt lgkmcnt(0)")
        e("s_sub_u32 s10, s8, s72")
        e(f"s_mul_i32 s10, s10, {spank}")
        e("s_add_u32 s10, s10, s8")
        e.label(".Lspank")
        e("s_memrealtime s[8:9]")
        e("s_waitcnt lgkmcnt(0)")
        e("s_sub_u32 s11, s8, s10")
        e("s_cmp_lt_i32 s11, 0")
        e("s_cbranch_scc1 .Lspank")
    e.label(".Lfin_stamp")
    stamp(7)
    stamps_flush(8)
    e("s_endpgm")
    e.label(".Lo_b")
    e(f"buffer_store_dword v80, v22, {WSR}, s75 offen sc1")
    e("s_branch .Lo_e")
    e.label(".Lyred")
    e("s_mov_b64 exec, 0xfffff")
    if stamps:
        e("s_waitcnt lgkmcnt(0)")
    e("s_barrier")
    for p in range(8):
        e(f"ds_read_b128 v[{84 + 4 * p}:{87 + 4 * p}], v1 offset:{YPART + 384 * p}")
    for p in range(1, 8, 2):
        e(f"s_waitcnt lgkmcnt({7 - p})")
        for r in range(4):
            e(f"v_add_f32 v{80 + 4 * p + r}, v{80 + 4 * p + r}, v{84 + 4 * p + r}")
        if p == 3 or p == 7:
            for r in range(4):
                e(f"v_add_f32 v{72 + 4 * p + r}, v{72 + 4 * p + r}, v{80 + 4 * p + r}")
    for r in range(4):
        e(f"v_add_f32 v{84 + r}, v{84 + r}, v{100 + r}")
    for r in range(4):
        tag(84 + r, 84 + r, NS[r])
    e(f"buffer_store_dwordx4 v[84:87], v23, {WSR}, s77 offen sc1")
    e("s_branch .Lfin_stamp")

    e.label(".Lffn")
    helper_common()
    G0, U0, W0 = DAT, DAT + 40, 120
    e("s_and_b32 s68, s6, 15")
    e("s_lshr_b32 s69, s6, 4")
    e("v_lshrrev_b32 v42, 4, v0")
    e("v_and_b32 v43, 15, v0")
    e("v_mul_u32_u24 v3, 20, v42")
    e("s_mul_i32 s7, s68, 80")
    e("v_add_u32 v3, s7, v3")
    e("s_mul_i32 s7, s68, 122880")
    e("s_mul_i32 s8, s69, 192")
    e("s_add_u32 s7, s7, s8")
    e("v_mul_u32_u24 v5, 30720, v42")
    e("v_lshl_add_u32 v5, v43, 4, v5")
    e("v_cmp_gt_u32 vcc, 12, v43")
    e("v_mov_b32 v6, 0x7ffffff0")
    e("v_cndmask_b32 v5, v6, v5, vcc")
    if st0:
        stamp(5)
    e("s_waitcnt lgkmcnt(0)")
    if st0:
        stamp(6)
    xloads()
    srd(SW, 28, "s7", 39 * 3072 + 192)
    srd(SU, 30, "s7", 39 * 3072 + 192)
    e("s_mov_b32 s7, 0")
    for t in range(10):
        e(f"buffer_load_dwordx4 v[{G0 + 4 * t}:{G0 + 4 * t + 3}], v5, s[{SW}:{SW + 3}], s7 offen{POL}")
        e(f"buffer_load_dwordx4 v[{U0 + 4 * t}:{U0 + 4 * t + 3}], v5, s[{SU}:{SU + 3}], s7 offen{POL}")
        if t < 9:
            e("s_add_u32 s7, s7, 3072")
        if t == hpre // 2 - 1:
            e("s_barrier")
    srd(SWS, 38, None, WS_USED)
    srd(SDBG, 36, None, 256)
    if nearly:
        e(f"buffer_load_dword v19, v18, s[{SDBG}:{SDBG + 3}], 0 offen sc1")
    selectors(5, 7, 8)
    layernorm(20 + nearly)
    if not nearly:
        e(f"buffer_load_dword v19, v18, s[{SDBG}:{SDBG + 3}], 0 offen sc1")
    stamp(1)
    DG, DU = 10, 14
    for t in range(10):
        buildA(PP + t)
        e(f"s_waitcnt vmcnt({21 - 2 * t - 1})")
        mfma(DG, A, G0 + 4 * t, t == 0)
        e(f"s_waitcnt vmcnt({21 - 2 * t - 2})")
        mfma(DU, A, U0 + 4 * t, t == 0)
    stamp(2)
    e("v_lshlrev_b32 v40, 6, v43")
    e("v_and_b32 v6, 1, v42")
    e("v_lshl_add_u32 v40, v6, 5, v40")
    e("v_lshrrev_b32 v6, 1, v42")
    e("v_lshl_add_u32 v40, v6, 4, v40")
    e("s_mul_i32 s10, s6, 768")
    e(f"s_add_u32 s10, s10, {GU - GID}")
    e("v_add_u32 v40, s10, v40")
    e("s_lshl_b32 s7, s6, 4")
    e("v_writelane_b32 v40, s7, 12")
    e(f"s_mov_b32 s10, {GID}")
    e(f"s_mov_b32 s11, {GID + BOFF}")
    e("s_mov_b32 s78, 0")
    e("s_mov_b32 s79, -1")
    e(f"v_cndmask_b32 v60, v{DG}, v{DG + 2}, s[78:79]")
    e(f"v_cndmask_b32 v61, v{DU}, v{DU + 2}, s[78:79]")
    e(f"v_cndmask_b32 v62, v{DG + 1}, v{DG + 3}, s[78:79]")
    e(f"v_cndmask_b32 v63, v{DU + 1}, v{DU + 3}, s[78:79]")
    for r in range(4):
        e(f"v_writelane_b32 v{60 + r}, s66, 12")
    e("s_mov_b32 s78, 0x0fff1fff")
    e("s_mov_b32 s79, 0x0fff0fff")
    if floor:
        e("s_branch .Lffn_down")
    nonce_wait(19, "f")
    for r in range(4):
        tag(60 + r, 60 + r, NS[r])
    stamp(3)
    def f_store(so, pol):
        e("s_mov_b64 exec, s[78:79]")
        e(f"buffer_store_dwordx4 v[60:63], v40, {WSR}, {so} offen{pol}")
        e("s_mov_b64 exec, -1")
    f_store("s10", "")
    def f_storeB():
        f_store("s11", " sc1")
    e.label(".Lffn_down")
    e("s_mul_i32 s7, s4, 61440")
    e("s_mul_i32 s8, s5, 160")
    e("s_add_u32 s7, s7, s8")
    srd(SD, 32, "s7", 47 * 1280 + 160)
    e("v_mul_u32_u24 v5, 15360, v42")
    e("v_lshl_add_u32 v5, v43, 4, v5")
    e("v_cmp_gt_u32 vcc, 10, v43")
    e("v_mov_b32 v6, 0x7ffffff0")
    e("v_cndmask_b32 v5, v6, v5, vcc")
    e("s_mov_b32 s7, 0")
    for qq in range(12):
        e(f"buffer_load_dwordx4 v[{W0 + 4 * qq}:{W0 + 4 * qq + 3}], v5, s[{SD}:{SD + 3}], s7 offen{POL}")
        if qq < 11:
            e("s_add_u32 s7, s7, 1280")
    if floor:
        e("s_waitcnt vmcnt(0)")
        stamp(4)
        stamps_flush(8)
        e("s_endpgm")
    e("s_mul_i32 s8, s69, 12288")
    e("s_and_b32 s7, s4, 1")
    e("s_mul_i32 s7, s7, 384")
    e("s_add_u32 s8, s8, s7")
    e(f"s_add_u32 s8, s8, {GU}")
    for i in range(1, 4):
        e(f"s_add_u32 s{72 + i}, s8, {3072 * i}")
    e("s_lshl_b32 s9, s69, 8")
    e(f"s_add_u32 s9, s9, {GID}")
    e("v_and_b32 v9, 31, v0")
    e("v_min_u32 v9, 23, v9")
    e("v_lshrrev_b32 v6, 5, v0")
    e("v_mul_u32_u24 v5, 768, v6")
    e("v_lshl_add_u32 v5, v9, 4, v5")
    e("v_lshlrev_b32 v41, 4, v43")
    if gs0:
        e(f"s_sleep {gs0}")
    e.label(".Lgg")
    for i in range(8):
        so = "s8" if i < 2 else f"s{72 + i // 2}"
        e(f"buffer_load_dwordx4 v[{68 + 4 * i}:{71 + 4 * i}], v5, {WSR}, {so} offen offset:{(i % 2) * 1536} sc1")
    e("s_mov_b64 exec, 0xffff")
    e(f"buffer_load_dwordx4 v[100:103], v41, {WSR}, s9 offen sc1")
    e("s_waitcnt vmcnt(0)")
    tags_ok([(100 + k, NS[k]) for k in range(4)], 6, ".Lgg_id")
    e("s_mov_b64 exec, -1")
    e("s_branch .Lgg_re")
    e.label(".Lgg_id")
    e("s_mov_b64 exec, -1")
    tags_ok([(68 + k, NS[k % 4]) for k in range(32)], 6, ".Lgg_ok")
    e.label(".Lgg_re")
    e(f"s_sleep {qs1}")
    fallback_retry("f", ".Lgg", [5, 41], f_storeB)
    e.label(".Lgg_ok")
    e("s_mov_b64 exec, 0xffff")
    xcc_check("f", 100, 6, f_storeB)
    e("s_mov_b64 exec, -1")
    untag(range(68, 100))
    for i in range(1, 8):
        for r in range(4):
            e(f"v_add_f32 v{68 + r}, v{68 + r}, v{68 + 4 * i + r}")
    for r in range(4):
        e(f"v_mov_b32 v{72 + r}, v{68 + r}")
    for r in range(4):
        e(f"v_permlane32_swap_b32 v{68 + r}, v{72 + r}")
    for r in range(4):
        e(f"v_add_f32 v{68 + r}, v{68 + r}, v{72 + r}")
    round4(68, 72)
    e("v_mul_f32 v68, v68, v69")
    e("v_mul_f32 v70, v70, v71")
    e("v_cvt_pk_bf16_f32 v6, v68, v70")
    e("v_lshlrev_b32 v5, 2, v9")
    e(f"ds_write_b32 v5, v6 offset:{HBUF}")
    e("v_mul_u32_u24 v5, 24, v42")
    e("s_waitcnt lgkmcnt(0)")
    for i in range(3):
        e(f"ds_read_b64 v[{70 + 2 * i}:{71 + 2 * i}], v5 offset:{HBUF + 8 * i}")
    e("s_waitcnt lgkmcnt(0)")
    DZ = 10
    for qq in range(12):
        src = 70 + qq // 2
        if qq % 2 == 0:
            e(f"v_and_b32 v6, 0xffff, v{src}")
        else:
            e(f"v_lshrrev_b32 v6, 16, v{src}")
        buildA(6)
        mfma(DZ, A, W0 + 4 * qq, qq == 0)
    e("v_lshlrev_b32 v5, 10, v43")
    e("v_lshl_add_u32 v5, v42, 4, v5")
    e("s_mul_i32 s8, s5, 10240")
    e("s_lshl_b32 s7, s4, 5")
    e("s_add_u32 s8, s8, s7")
    e(f"s_add_u32 s8, s8, {ZP}")
    for r in range(4):
        tag(DZ + r, DZ + r, NS[r])
    e("s_mov_b64 exec, 0x03ff03ff")
    e(f"buffer_store_dwordx4 v[{DZ}:{DZ + 3}], v5, {WSR}, s8 offen sc1")
    stamp(4)
    stamps_flush(5)
    e("s_endpgm")

    e.label(".Lkv")
    common()
    SK, SV, SO = 40, 44, 48
    K0, V0, WO, S0 = 40, 88, 136, 8
    QR = [160, 164, 20]
    if st0:
        stamp(2)
    e("s_sub_u32 s64, s3, 4")
    e("v_mul_u32_u24 v3, 384, v2")
    e("v_add_u32 v3, v3, v4")
    e("s_mul_i32 s7, s4, 3145728")
    e("s_mul_i32 s8, s5, 98304")
    e("s_add_u32 s7, s7, s8")
    e("s_mul_i32 s8, s64, 12288")
    e("s_add_u32 s7, s7, s8")
    e(f"s_add_u32 s7, s7, {6144 * 384}")
    ra, rb, rc, rd = [int(ch) for ch in str(rot)[1:]]
    e(f"s_mul_i32 s8, s64, {ra}")
    if rb:
        e(f"s_mul_i32 s9, s5, {rb}")
        e("s_add_u32 s8, s8, s9")
    if rc:
        e(f"s_mul_i32 s9, s4, {rc}")
        e("s_add_u32 s8, s8, s9")
    if rd:
        e("s_lshr_b32 s9, s4, 2")
        e(f"s_mul_i32 s9, s9, {rd}")
        e("s_add_u32 s8, s8, s9")
    for t in range(4):
        e(f"s_add_u32 s9, s8, {t}")
        e("s_and_b32 s9, s9, 3")
        e(f"s_mul_i32 s{74 + t}, s9, 3072")
    e("s_cmp_lg_u32 s3, 11")
    e("s_cbranch_scc1 .Lnoinit")
    e("v_min_u32 v5, 20, v0")
    e("v_lshlrev_b32 v5, 2, v5")
    e("v_mov_b32 v6, -1")
    e(f"ds_write_b32 v5, v6 offset:{MSL}")
    e.label(".Lnoinit")
    e("s_waitcnt lgkmcnt(0)")
    if st0:
        stamp(3)
    srd(SK, 18, "s7", 12288)
    if touch:
        e("s_cmp_lg_u32 s3, 10")
        e("s_cbranch_scc1 .Lnotouch")
        e("s_mov_b64 exec, 1")
        srd(SV, 20, "s7", 12288)
        e(f"buffer_load_dword v8, v18, s[{SV}:{SV + 3}], 0 offen nt")
        e("s_mul_i32 s8, s4, 245760")
        srd(SO, 24, "s8", 245760)
        e(f"buffer_load_dword v9, v18, s[{SO}:{SO + 3}], 0 offen nt")
        e("s_mul_i32 s8, s4, 61440")
        srd(SO, 32, "s8", 61440)
        e(f"buffer_load_dword v10, v18, s[{SO}:{SO + 3}], 0 offen nt")
        srd(SWS, 38, None, WS_USED)
        e(f"s_mov_b32 s8, {WS_USED - 4096}")
        e(f"buffer_load_dword v11, v18, {WSR}, s8 offen nt")
        srd(SO, 34, None, 1280)
        e(f"buffer_load_dword v12, v18, s[{SO}:{SO + 3}], 0 offen nt")
        e("s_mov_b64 exec, -1")
        e.label(".Lnotouch")

    def side_work(n):
        if n == kvpre:
            e("s_barrier")
        if n == TH:
            srd(SV, 20, "s7", 12288)
            srd(SWS, 38, None, WS_USED)
            e("v_and_b32 v1, 15, v0")
            e("v_lshrrev_b32 v2, 4, v0")
            e("v_mul_u32_u24 v6, 7680, v2")
            e("v_lshl_add_u32 v6, v1, 4, v6")
            e("v_cmp_gt_u32 vcc, 10, v1")
            e("v_mov_b32 v7, 0x7ffffff0")
            e("v_cndmask_b32 v6, v7, v6, vcc")
            e("s_mul_i32 s7, s4, 245760")
            e("s_mul_i32 s8, s64, 30720")
            e("s_add_u32 s7, s7, s8")
            e("s_mul_i32 s8, s5, 160")
            e("s_add_u32 s7, s7, s8")
            srd(SO, 24, "s7", 23 * 1280 + 160)
            e("s_movk_i32 s66, 3840")
            selectors(7, 8, 9)
            e("v_lshrrev_b32 v16, 5, v0")
            e("v_mul_u32_u24 v16, 768, v16")
            e("v_lshl_add_u32 v16, v4, 1, v16")
            e("v_and_b32 v13, 1, v2")
            e("v_lshl_add_u32 v16, v13, 4, v16")
            e("s_mul_i32 s7, s64, 1536")
            e("v_add_u32 v16, s7, v16")
            e("s_lshl_b32 s7, s64, 2")
            e("v_mov_b32 v17, s7")
            e("v_lshlrev_b32 v14, 4, v0")
            e("s_lshl_b32 s69, s4, 13")
            e("s_lshl_b32 s7, s64, 10")
            e("s_add_u32 s69, s69, s7")
            e(f"s_add_u32 s69, s69, {OP}")
            e("v_lshlrev_b32 v19, 5, v1")
            e("v_lshl_add_u32 v19, v2, 4, v19")
            e("s_mul_i32 s7, s64, 384")
            e("v_add_u32 v19, s7, v19")
            e("s_mov_b32 s78, 0x00ff00ff")
            e("s_mov_b32 s79, 0xff00ff00")
            e(f"s_mov_b32 s70, 0x{f2u(192.0 ** -0.5):08x}")
            if xb:
                packed = sum(int(ch) << (4 * i) for i, ch in enumerate(f"{xb:08d}"))
                e("s_lshr_b32 s8, s4, 2")
                e("s_lshl_b32 s8, s8, 2")
                e(f"s_lshr_b32 s72, 0x{packed:08x}, s8")
                e("s_and_b32 s72, s72, 15")
    MX, AP, O = 12, 40, 56

    def chunkA():
        e.label(".Lqs")
        e(f"ds_read_b128 v[36:39], v18 offset:{QFL}")
        for r3 in range(3):
            e(f"ds_read_b128 v[{QR[r3]}:{QR[r3] + 3}], v4 offset:{QBUF + 128 * r3}")
        e("s_waitcnt lgkmcnt(0)")
        e("v_max3_u32 v13, v36, v37, v38")
        e("v_cmp_eq_u32 vcc, -1, v13")
        e("s_cbranch_vccz .Lqs_ok")
        e("s_sleep 2")
        spin_check(".Lqs", 10)
        e.label(".Lqs_ok")
        e("s_mov_b32 s80, 0")
        e("v_readfirstlane_b32 s81, v36")
        e("v_add_u32 v14, v14, v39")
        stamp(2)
        for i in range(12):
            for t in range(4):
                q = QR[i // 4] + i % 4
                if i == 0:
                    e(f"v_dot2_f32_bf16 v{S0 + t}, v{K0 + 12 * t + i}, v{q}, 0")
                else:
                    e(f"v_dot2_f32_bf16 v{S0 + t}, v{K0 + 12 * t + i}, v{q}, v{S0 + t}")
        nonce_regs()

    def chunkB():
        for pat in P8:
            for t in range(4):
                e(f"v_add_f32_dpp v{S0 + t}, v{S0 + t}, v{S0 + t} {pat} {DPPM}")
        stamp(3)
        round4(S0, 36)
        for t in range(4):
            e(f"v_mul_f32 v{S0 + t}, s70, v{S0 + t}")
        round4(S0, 36)
        e(f"v_max3_f32 v{MX}, v{S0}, v{S0 + 1}, v{S0 + 2}")
        e(f"v_max_f32 v{MX}, v{MX}, v{S0 + 3}")
        e(f"v_max_f32_dpp v{MX}, v{MX}, v{MX} row_ror:8 {DPPM}")
        rows4(MX, "v_max_f32")
        e(f"v_min_u32 v13, -2, v{MX}")
        e(f"ds_write_b32 v17, v13 offset:{MSL}")

    def chunkC():
        for t in range(4):
            e(f"v_sub_f32 v{S0 + t}, v{S0 + t}, v{MX}")
        for t in range(4):
            e(f"v_mul_f32 v{S0 + t}, s67, v{S0 + t}")
        for t in range(4):
            e(f"v_exp_f32 v{S0 + t}, v{S0 + t}")
        e(f"v_add_f32 v13, v{S0}, v{S0 + 1}")
        e(f"v_add_f32 v13, v13, v{S0 + 2}")
        e(f"v_add_f32 v13, v13, v{S0 + 3}")
        for t in range(4):
            e(f"v_cvt_pk_bf16_f32 v{36 + t}, v{S0 + t}, v{S0 + t}")
        e(f"v_add_f32_dpp v13, v13, v13 row_ror:8 {DPPM}")
        rows4(13, "v_add_f32")
        e(f"v_min_u32 v13, -2, v13")
        e(f"ds_write_b32 v17, v13 offset:{LSL}")
        for t in range(4):
            buildA(36 + t, AP + 4 * t)
        stamp(4)

    def wo_load(a):
        r = WO + 4 * a
        e(f"buffer_load_dwordx4 v[{r}:{r + 3}], v6, s[{SO}:{SO + 3}], {'s66' if a >= 3 else '0'} offen offset:{1280 * (a % 3)}{POL}")

    kv = [("k", m) for m in range(12)] + [("v", m) for m in range(12)]
    if wo_mode == 0:
        seq = kv
        win = [TH] * 24
    elif wo_mode == 1:
        seq = kv[:12] + [("w", a) for a in range(6)] + kv[12:]
        win = [TH] * 12 + [TH + 1] + [TW] * 6 + [TH + 1] + [TH] * 10
    elif wo_mode == 2:
        seq = []
        for i in range(6):
            seq += kv[3 + 2 * i - 3 + 3: 3 + 2 * i + 2] if False else []
        seq = kv[:4]
        for i in range(6):
            seq += [("w", i)] + kv[4 + 2 * i: 6 + 2 * i]
        seq += kv[16:]
        win = [TH] * 5 + [TH + 1] * 17 + [TH] * 8
    pos = {x: n for n, x in enumerate(seq)}
    nq = pos[("v", nqk - 12)]
    landed = -1
    pv_done = 0
    for n, (kind, m) in enumerate(seq):
        side_work(n)
        xbmax = max(int(ch) for ch in f"{xb:08d}")
        if xb and xb0 <= n < xb0 + xbmax:
            lab = e.newlabel("Lk")
            e(f"s_waitcnt vmcnt({win[n]})")
            e(f"s_cmp_gt_u32 s72, {n - xb0}")
            e(f"s_cbranch_scc1 {lab}")
            e(f"s_waitcnt vmcnt({win[n] - 1})")
            e.label(lab)
            landed = max(landed, n - win[n] - 1)
        elif n >= win[n]:
            e(f"s_waitcnt vmcnt({win[n] - 1})")
            landed = max(landed, n - win[n])
        if kind == "w":
            wo_load(m)
        else:
            S, R0 = (SK, K0) if kind == "k" else (SV, V0)
            r = R0 + 4 * m
            e(f"buffer_load_dwordx4 v[{r}:{r + 3}], v3, s[{S}:{S + 3}], s{74 + m // 3} offen offset:{128 * (m % 3)}{POL}")
        if floor:
            if st0:
                if n == 3:
                    stamp(4)
            elif n in (6, 12, 18):
                stamp({6: 2, 12: 3, 18: 4}[n])
            continue
        if n == nq:
            assert landed >= pos[("k", 11)]
            chunkA()
        if n == nq + 1:
            chunkB()
        if n == nq + 2:
            chunkC()
        if n > nq + 2 or n == len(seq) - 1:
            while pv_done < 12 and pos[("v", pv_done)] <= landed:
                mfma(O + 4 * (pv_done % 3), AP + 4 * (pv_done // 3), V0 + 4 * pv_done, pv_done < 3)
                pv_done += 1
    NL = 6 if wo_mode == 0 else 0
    if wo_mode:
        wo_wait = TH
    stamp(1)
    if vrv:
        e("v_mov_b32 v13, 1")
        e("s_mov_b64 exec, 1")
        e(f"ds_add_u32 v18, v13 offset:{VCN}")
        e("s_mov_b64 exec, -1")
        e.label(".Lvr")
        e(f"ds_read_b32 v13, v18 offset:{VCN}")
        e("s_waitcnt lgkmcnt(0)")
        e(f"v_cmp_le_i32 vcc, {vrv - 1}, v13")
        e("s_cbranch_vccnz .Lvr_ok")
        e("s_sleep 1")
        spin_check(".Lvr", 10)
        e.label(".Lvr_ok")
        e("s_mov_b32 s80, 0")
    if wo_wait < TH:
        if not floor:
            while pv_done < 12 - wo_wait:
                e(f"s_waitcnt vmcnt({11 - pv_done})")
                if pv_done == 11 - wo_wait:
                    break
                mfma(O + 4 * (pv_done % 3), AP + 4 * (pv_done // 3), V0 + 4 * pv_done, pv_done < 3)
                pv_done += 1
        else:
            e(f"s_waitcnt vmcnt({wo_wait})")
    for qq in range(NL):
        wo_load(qq)
    if floor:
        e(f"s_waitcnt vmcnt({NL})")
        stamp(5)
        e("s_waitcnt vmcnt(0)")
        stamp(6)
        stamps_flush(7)
        e("s_endpgm")
    while pv_done < 12:
        e(f"s_waitcnt vmcnt({11 + NL - pv_done})")
        mfma(O + 4 * (pv_done % 3), AP + 4 * (pv_done // 3), V0 + 4 * pv_done, pv_done < 3)
        pv_done += 1
    e("s_mov_b64 exec, s[78:79]")
    for r3 in range(3):
        e(f"ds_write_b128 v16, v[{O + 4 * r3}:{O + 4 * r3 + 3}] offset:{OPART + 256 * r3}")
    e("s_mov_b64 exec, -1")
    stamp(5)
    e("s_waitcnt lgkmcnt(0)")
    e("s_barrier")
    if od:
        e(f"s_sleep {od}")
    if pp:
        e(f"buffer_load_dwordx3 v[64:66], v14, {WSR}, s69 offen sc1")
        e(f"s_sleep {pp}")
        e.label(".Log")
        e(f"buffer_load_dwordx3 v[68:70], v14, {WSR}, s69 offen sc1")
        e("s_waitcnt vmcnt(1)")
        tags_ok([(64 + k, NS[k]) for k in range(3)], 72, ".Log_ok")
        e(f"buffer_load_dwordx3 v[64:66], v14, {WSR}, s69 offen sc1")
        e("s_waitcnt vmcnt(1)")
        tags_ok([(68 + k, NS[k]) for k in range(3)], 72, ".Log_okb")
        spin_check(".Log")
        e.label(".Log_okb")
        for k in range(3):
            e(f"v_and_b32 v{76 + k}, 0xffffff00, v{68 + k}")
        e("s_branch .Log_c")
    else:
        e.label(".Log")
        e(f"buffer_load_dwordx3 v[64:66], v14, {WSR}, s69 offen sc1")
        e("s_waitcnt vmcnt(0)")
        tags_ok([(64 + k, NS[k]) for k in range(3)], 72, ".Log_ok")
        spin_check(".Log")
    e.label(".Log_ok")
    for k in range(3):
        e(f"v_and_b32 v{76 + k}, 0xffffff00, v{64 + k}")
    e.label(".Log_c")
    stamp(6)
    for pat in P8:
        for r in range(3):
            e(f"v_add_f32_dpp v{76 + r}, v{76 + r}, v{76 + r} {pat} {DPPM}")
    for r in range(3):
        e(f"v_cvt_pk_bf16_f32 v{76 + r}, v{76 + r}, 0")
    Y = 72
    buildA(76, 88)
    for r in range(3):
        e(f"v_mov_b32_dpp v{80 + r}, v{76 + r} row_ror:8 {DPPM}")
    src = [76, 77, 78, 80, 81, 82]
    for qq in range(6):
        if qq < 5:
            buildA(src[qq + 1], 92 + 4 * qq)
        mfma(Y, 88 + 4 * qq, WO + 4 * qq, qq == 0)
    e("s_mov_b64 exec, 0x03ff03ff")
    e(f"ds_write_b128 v19, v[{Y}:{Y + 3}] offset:{YPART}")
    e("s_waitcnt lgkmcnt(0)")
    e("s_barrier")
    stamp(7)
    stamps_flush(8)
    e.label(".Lend")
    e("s_endpgm")

    e.raw('.section .rodata,"a"')
    e.raw(".p2align 6")
    e.raw(f".amdhsa_kernel {NAME}_kernel")
    e.raw("  .amdhsa_next_free_vgpr 168")
    e.raw("  .amdhsa_next_free_sgpr 102")
    e.raw("  .amdhsa_accum_offset 168")
    e.raw("  .amdhsa_group_segment_fixed_size 0")
    e.raw("  .amdhsa_kernarg_size 96")
    e.raw("  .amdhsa_user_sgpr_count 2")
    e.raw("  .amdhsa_user_sgpr_kernarg_segment_ptr 1")
    e.raw("  .amdhsa_system_sgpr_workgroup_id_x 1")
    e.raw("  .amdhsa_float_denorm_mode_32 3")
    e.raw(".end_amdhsa_kernel")
    return e.text()


if __name__ == "__main__":
    import argparse, inspect
    ap = argparse.ArgumentParser()
    ap.add_argument("-o", default=f"cdna_kernels/{NAME}.s")
    sig = inspect.signature(gen)
    for nm, p in sig.parameters.items():
        if isinstance(p.default, bool):
            ap.add_argument("--" + nm, action="store_true")
        else:
            ap.add_argument("--" + nm, type=int, default=p.default)
    a = vars(ap.parse_args())
    o = a.pop("o")
    open(o, "w").write(gen(**a))
    print("wrote", o)
```

```python
import sys, struct
from asmlib import Emitter

NAME = "recurrent_scan__sliding_block_cached__glu_gated_bilinear__decode"

def f2u(f):
    return struct.unpack("<I", struct.pack("<f", f))[0]

QP = 0x0
QID = 0x30000
GID = 0x38000
GU = 0x40000
OP = 0x80000
BOFF = 0x100000
ZP = 0x200000
YP = 0x220000
WS_USED = 0x240000
STAMP = 0x300000
QBUF = 0
MSL = 384
LSL = 416
QFL = 448
VCN = 464
HBUF = 480
OPART = 1024
YPART = OPART + 16 * 768
LDS_BYTES = YPART + 8 * 384

SPIN_MAX = 200000
FALLBACK = 6
LOG2E = 1.4426950408889634


def gen(stamps=False, TH=3, floor=False, wo_late=6, badmap=0, qs0=40, qs1=16, gs0=60, mss=2, zs=16, rot=10100, spank=0, yb0=0, yb1=0, wo_pos=1, ylay=0, touch=0, nearly=1, kvpre=2, hpre=10, mlwarm=0, nqk=17, wo_wait=2, wo_mode=0, TW=5, osl=0, msl=0, ysl=0, vrv=0, od=6, mlp=4, xb=0, xb0=6, st0=0, pp=0, ppy=0):
    e = Emitter()
    POL = " nt"
    hdr = open("cdna_kernels/%s.s.ref" % NAME).read().split("; Override launch")[0]
    e.raw(hdr.rstrip("\n"))
    for line in """
Fused single-launch kernel: 256 workgroups (one per CU) x 12 waves. Workgroup = (head h, split j).
  waves 0-2 : layernorm, 80-row slice of x@wq (MFMA, one-hot A operand), exchange of q partials inside the head,
              later the cross-wave o reduction, y reduction and (80 of them) the final output columns
  wave 3    : 40-row slice of gate/up for a pair of heads, exchange, h = g*u, 48x80 tile of w_down -> z partials
  waves 4-11: 32 keys each: K/V streamed to registers (counted vmcnt window), q.k by v_dot2, true-max softmax
              (flash-decoding combine of per-wave / per-workgroup maxima), P@V by MFMA, 24x80 tile of wo
Hand-offs go through d_ws. Every exchanged f32 carries one byte of a per-launch nonce (published in d_debug by
workgroup 0) in its low 8 bits, so stale or random d_ws contents are never accepted. Hand-offs inside a head use
plain stores + L1-bypassing loads only after the exchanged XCC ids prove that all partners share one L2; otherwise
a write-through (sc1) copy is used. Cross-head hand-offs (z, y) are always write-through. All spins are bounded;
s_sleep appears only as poll back-off.
""".strip().split("\n"):
        e.raw("; " + line)
    e.raw(f"; @launch grid=(256,1,1) block=(768,1,1) lds={LDS_BYTES}")
    e.raw('.amdgcn_target "amdgcn-amd-amdhsa--gfx950"')
    e.raw(".text")
    e.raw(f".globl {NAME}_kernel")
    e.raw(".p2align 8")
    e.raw(f".type {NAME}_kernel,@function")
    e.raw(f"{NAME}_kernel:")

    def stamp(i):
        if stamps:
            e(f"s_memrealtime s[{84 + 2 * i}:{85 + 2 * i}]")

    def stamps_flush(n):
        if not stamps:
            return
        e("s_waitcnt lgkmcnt(0)")
        e("s_mul_i32 s7, s6, 12")
        e("s_add_u32 s7, s7, s3")
        e("s_lshl_b32 s7, s7, 6")
        e(f"s_add_u32 s7, s7, {STAMP}")
        e("s_add_u32 s8, s38, s7")
        e("s_addc_u32 s9, s39, 0")
        e("s_mov_b32 s10, 64")
        e("s_mov_b32 s11, 0x20000")
        e("s_mov_b64 exec, 1")
        e("v_mov_b32 v1, 0")
        for i in range(n):
            e(f"v_mov_b32 v2, s{84 + 2 * i}")
            e(f"buffer_store_dword v2, v1, s[8:11], 0 offen offset:{4 * i}")
        e("s_waitcnt vmcnt(0)")

    def srd(d, blo, off, nbytes):
        if off is None:
            e(f"s_mov_b32 s{d}, s{blo}")
            e(f"s_mov_b32 s{d + 1}, s{blo + 1}")
        else:
            e(f"s_add_u32 s{d}, s{blo}, {off}")
            e(f"s_addc_u32 s{d + 1}, s{blo + 1}, 0")
        e(f"s_mov_b32 s{d + 2}, {nbytes}")
        e(f"s_mov_b32 s{d + 3}, 0x20000")

    def spin_check(lbl_retry, mult=1):
        e("s_add_u32 s80, s80, 1")
        e(f"s_cmp_lt_u32 s80, {SPIN_MAX * mult}")
        e(f"s_cbranch_scc1 {lbl_retry}")
        e("s_branch .Lend")

    def fallback_retry(tg, lbl_retry, vaddrs, storeB):
        e("s_add_u32 s80, s80, 1")
        e(f"s_cmp_lt_u32 s80, {FALLBACK}")
        e(f"s_cbranch_scc1 {lbl_retry}")
        e("s_cmp_lg_u32 s82, 0")
        e(f"s_cbranch_scc1 .Lfb_{tg}")
        storeB()
        e("s_mov_b32 s82, 1")
        e.label(f".Lfb_{tg}")
        for v in vaddrs:
            e(f"v_xor_b32 v{v}, 0x{BOFF:x}, v{v}")
        e(f"s_cmp_lt_u32 s80, {SPIN_MAX}")
        e(f"s_cbranch_scc1 {lbl_retry}")
        e("s_branch .Lend")

    def xcc_check(tg, vid, tmp, storeB):
        e("s_mov_b32 s80, 0")
        e("s_mov_b32 s83, 0")
        e(f"v_lshrrev_b32 v{tmp}, 8, v{vid}")
        e(f"v_cmp_ne_u32 vcc, s65, v{tmp}")
        e(f"s_cbranch_vccz .Lxc_{tg}")
        e(f"s_mov_b32 s83, 0x{BOFF:x}")
        e("s_cmp_lg_u32 s82, 0")
        e(f"s_cbranch_scc1 .Lxc_{tg}")
        storeB()
        e.label(f".Lxc_{tg}")

    NS = ["s81", "s61", "s62", "s63"]
    VFF = 31

    def nonce_regs():
        for k in range(1, 4):
            e(f"s_lshr_b32 {NS[k]}, s81, {8 * k}")

    def tag(dst, src, n):
        e(f"v_bfi_b32 v{dst}, v{VFF}, {n}, v{src}")

    def tags_ok(pairs, acc, ok_label):
        for i, (w, n) in enumerate(pairs):
            if i == 0:
                e(f"v_xor_b32 v{acc}, {n}, v{w}")
            else:
                e(f"v_bitop3_b32 v{acc}, v{acc}, v{w}, {n} bitop3:0xf6")
        e(f"v_and_b32 v{acc}, v{VFF}, v{acc}")
        e(f"v_cmp_ne_u32 vcc, 0, v{acc}")
        e(f"s_cbranch_vccz {ok_label}", safe_branch=True)

    def untag(regs):
        for r in regs:
            e(f"v_and_b32 v{r}, 0xffffff00, v{r}")

    SEL = 32

    def selectors(t0, t1, t2):
        e(f"v_bfe_u32 v{t0}, v0, 3, 1")
        e(f"v_mul_u32_u24 v{t0}, 0x202, v{t0}")
        e(f"v_add_u32 v{t0}, 0x100, v{t0}")
        e(f"v_and_b32 v{t1}, 1, v0")
        e(f"v_lshlrev_b32 v{t1}, 4, v{t1}")
        e(f"v_lshlrev_b32 v{t0}, v{t1}, v{t0}")
        e(f"v_mov_b32 v{t2}, 0x0c0c0000")
        e(f"v_lshrrev_b32 v{t2}, v{t1}, v{t2}")
        e(f"v_or_b32 v{t0}, v{t0}, v{t2}")
        e(f"v_bfe_u32 v{t1}, v0, 1, 2")
        e(f"v_mov_b32 v{t2}, 0x0c0c0c0c")
        for k in range(4):
            e(f"v_cmp_eq_u32 vcc, {k}, v{t1}")
            e(f"v_cndmask_b32 v{SEL + k}, v{t2}, v{t0}, vcc")

    DPPM = "row_mask:0xf bank_mask:0xf"
    P8 = ("quad_perm:[1,0,3,2]", "quad_perm:[2,3,0,1]", "row_half_mirror")
    P16 = P8 + ("row_mirror",)

    def row_sum(v):
        for pat in P16:
            e(f"v_add_f32_dpp v{v}, v{v}, v{v} {pat} {DPPM}")

    def rows4(v, op):
        for i in range(4):
            e(f"v_readlane_b32 s{12 + i}, v{v}, {16 * i}")
        e(f"v_mov_b32 v{v}, s12")
        for i in range(1, 4):
            e(f"{op} v{v}, s{12 + i}, v{v}")

    def bf16r(v, t):
        e(f"v_cvt_pk_bf16_f32 v{t}, v{v}, v{v}")
        e(f"v_lshlrev_b32 v{v}, 16, v{t}")

    def mfma(d, a, b, first):
        e(f"v_mfma_f32_16x16x32_bf16 v[{d}:{d + 3}], v[{a}:{a + 3}], v[{b}:{b + 3}], "
          + ("0" if first else f"v[{d}:{d + 3}]"))

    def rows_sum4(b, t):
        for sw in ("v_permlane16_swap_b32", "v_permlane32_swap_b32"):
            for r in range(4):
                e(f"v_mov_b32 v{t + r}, v{b + r}")
            for r in range(4):
                e(f"{sw} v{b + r}, v{t + r}")
            for r in range(4):
                e(f"v_add_f32 v{b + r}, v{b + r}, v{t + r}")

    def col_sum(b):
        e(f"v_permlane32_swap_b32 v{b}, v{b + 1}")
        e(f"v_permlane32_swap_b32 v{b + 2}, v{b + 3}")
        e(f"v_add_f32 v{b}, v{b}, v{b + 1}")
        e(f"v_add_f32 v{b + 2}, v{b + 2}, v{b + 3}")
        e(f"v_permlane16_swap_b32 v{b}, v{b + 2}")
        e(f"v_add_f32 v{b}, v{b}, v{b + 2}")
        for pat in ("row_ror:2", "row_ror:4", "row_ror:8"):
            e(f"v_add_f32_dpp v{b}, v{b}, v{b} {pat} {DPPM}")

    def round4(b, t):
        e(f"v_cvt_pk_bf16_f32 v{t}, v{b}, v{b + 1}")
        e(f"v_cvt_pk_bf16_f32 v{t + 1}, v{b + 2}, v{b + 3}")
        e(f"v_lshlrev_b32 v{b}, 16, v{t}")
        e(f"v_and_b32 v{b + 1}, 0xffff0000, v{t}")
        e(f"v_lshlrev_b32 v{b + 2}, 16, v{t + 1}")
        e(f"v_and_b32 v{b + 3}, 0xffff0000, v{t + 1}")

    SX, SW, SU, SD, SWS, SDBG = 40, 44, 48, 52, 56, 60
    WSR = f"s[{SWS}:{SWS + 3}]"
    e("s_cmp_ge_u32 s2, 256")
    e("s_cbranch_scc1 .Lend")
    e("s_load_dwordx16 s[16:31], s[0:1], 0")
    e("s_load_dwordx8 s[32:39], s[0:1], 64")
    e("s_memrealtime s[72:73]")
    if stamps:
        for i in range(1, 8):
            e(f"s_mov_b32 s{84 + 2 * i}, 0")
    stamp(0)
    e("v_lshrrev_b32 v1, 6, v0")
    e("v_and_b32 v0, 63, v0")
    e("v_readfirstlane_b32 s3, v1")
    e("s_cmp_ge_u32 s3, 4")
    e("s_cbranch_scc1 .Lkv", safe_branch=True)
    e("s_cmp_eq_u32 s3, 3")
    e("s_cbranch_scc1 .Lffn", safe_branch=True)

    def common():
        if badmap == 2:
            e("s_lshr_b32 s7, s2, 7")
            e("s_xor_b32 s2, s2, s7")
            e("s_lshr_b32 s7, s2, 3")
            e("s_and_b32 s7, s7, 1")
            e("s_xor_b32 s2, s2, s7")
        if badmap == 3:
            e("s_lshr_b32 s7, s2, 6")
            e("s_and_b32 s7, s7, 1")
            e("s_xor_b32 s2, s2, s7")
        e("s_and_b32 s7, s2, 7")
        e("s_lshr_b32 s8, s2, 3")
        e("s_lshr_b32 s9, s8, 3")
        e("s_lshl_b32 s4, s7, 2")
        e("s_add_u32 s4, s4, s9")
        e("s_and_b32 s5, s8, 7")
        if badmap == 1:
            e("s_lshr_b32 s4, s2, 3")
            e("s_and_b32 s5, s2, 7")
        e("s_lshl_b32 s6, s4, 3")
        e("s_add_u32 s6, s6, s5")
        e("s_mov_b32 s80, 0")
        e(f"s_mov_b32 s67, 0x{f2u(LOG2E):08x}")
        e("v_mov_b32 v18, 0")
        e(f"v_mov_b32 v{VFF}, 0xff")
        e("v_lshrrev_b32 v2, 3, v0")
        e("v_and_b32 v4, 7, v0")
        e("v_lshlrev_b32 v4, 4, v4")

    XS, XR = 10, 36
    PP = 20
    A = 36
    DAT = 44

    def helper_common():
        e("s_setprio 3")
        common()
        e("v_lshlrev_b32 v1, 4, v0")
        e("v_lshlrev_b32 v9, 2, v0")
        e("s_getreg_b32 s65, hwreg(HW_REG_XCC_ID, 0, 4)")
        e("s_lshl_b32 s66, s65, 8")
        e("s_mov_b32 s82, 0")

    helper_common()

    def xloads():
        srd(SX, 16, None, 1280)
        e(f"buffer_load_dwordx4 v[{XS}:{XS + 3}], v1, s[{SX}:{SX + 3}], 0 offen")
        e(f"buffer_load_dword v{XS + 4}, v9, s[{SX}:{SX + 3}], 0 offen offset:1024")
        e(f"buffer_load_dwordx4 v[{XR}:{XR + 3}], v3, s[{SX}:{SX + 3}], 0 offen")
        e(f"buffer_load_dword v{XR + 4}, v3, s[{SX}:{SX + 3}], 0 offen offset:16")

    def layernorm(nafter):
        if st0:
            stamp(7)
        e(f"s_waitcnt vmcnt({nafter})")
        if st0:
            stamp(3)
        for i in range(5):
            e(f"v_lshlrev_b32 v{PP + 2 * i}, 16, v{XS + i}")
            e(f"v_and_b32 v{PP + 2 * i + 1}, 0xffff0000, v{XS + i}")
        e(f"v_add_f32 v5, v{PP}, v{PP + 1}")
        for i in range(2, 10):
            e(f"v_add_f32 v5, v5, v{PP + i}")
        row_sum(5)
        rows4(5, "v_add_f32")
        e(f"v_mul_f32 v5, 0x{f2u(1.0 / 640):08x}, v5")
        e(f"v_sub_f32 v6, v{PP}, v5")
        e("v_mul_f32 v7, v6, v6")
        for i in range(1, 10):
            e(f"v_sub_f32 v6, v{PP + i}, v5")
            e("v_fmac_f32 v7, v6, v6")
        row_sum(7)
        rows4(7, "v_add_f32")
        e(f"v_mul_f32 v7, 0x{f2u(1.0 / 640):08x}, v7")
        bf16r(5, 6)
        bf16r(7, 6)
        e(f"v_add_f32 v7, 0x{f2u(1e-5):08x}, v7")
        bf16r(7, 6)
        e("v_sqrt_f32 v7, v7")
        bf16r(7, 6)
        e("v_rcp_f32 v8, v7")
        for i in range(5):
            a, b = 10, 11
            e(f"v_lshlrev_b32 v{a}, 16, v{XR + i}")
            e(f"v_and_b32 v{b}, 0xffff0000, v{XR + i}")
            e(f"v_sub_f32 v{a}, v{a}, v5")
            e(f"v_sub_f32 v{b}, v{b}, v5")
            e(f"v_cvt_pk_bf16_f32 v6, v{a}, v{b}")
            e(f"v_lshlrev_b32 v{a}, 16, v6")
            e(f"v_and_b32 v{b}, 0xffff0000, v6")
            for (x, dst) in ((a, PP + 2 * i), (b, PP + 2 * i + 1)):
                q, r = 12, 13
                e(f"v_mul_f32 v{q}, v{x}, v8")
                e(f"v_fma_f32 v{r}, -v{q}, v7, v{x}")
                e(f"v_fma_f32 v{q}, v{r}, v8, v{q}")
                e(f"v_cvt_pk_bf16_f32 v{dst}, v{q}, v{q}")

    def buildA(src, dst=None):
        dst = A if dst is None else dst
        for k in range(4):
            e(f"v_perm_b32 v{dst + k}, v{src}, v{src}, v{SEL + k}")

    def combine_halves(D, t0, t1):
        for r in range(4):
            e(f"v_mov_b32_dpp v{t0 + r}, v{D + r} row_ror:8 {DPPM}")
        for r in range(4):
            e(f"v_permlane32_swap_b32 v{t0 + r}, v{t1 + r}")
        for r in range(4):
            e(f"v_add_f32 v{D + r}, v{D + r}, v{t1 + r}")

    def nonce_wait(vF, tg):
        e.label(f".Lfl_{tg}")
        e("s_waitcnt vmcnt(0)")
        e(f"v_readfirstlane_b32 s81, v{vF}")
        e("s_cmp_lg_u32 s81, 0")
        e(f"s_cbranch_scc1 .Lfl_{tg}_ok")
        e("s_sleep 2")
        e(f"buffer_load_dword v{vF}, v18, s[{SDBG}:{SDBG + 3}], 0 offen sc1")
        spin_check(f".Lfl_{tg}")
        e.label(f".Lfl_{tg}_ok")
        e("s_mov_b32 s80, 0")
        nonce_regs()

    e("v_mul_u32_u24 v3, 20, v2")
    e("s_mul_i32 s7, s5, 160")
    e("v_add_u32 v3, s7, v3")
    e("s_mul_i32 s7, s5, 983040")
    e("s_mul_i32 s8, s4, 384")
    e("s_add_u32 s7, s7, s8")
    e("s_lshl_b32 s8, s3, 7")
    e("s_add_u32 s7, s7, s8")
    e("s_mov_b32 s8, 122880")
    e("v_mul_lo_u32 v5, v2, s8")
    e("v_add_u32 v5, v5, v4")
    if st0:
        stamp(5)
    e("s_or_b32 s9, s2, s3")
    e("s_waitcnt lgkmcnt(0)")
    if st0:
        stamp(6)
    e("s_cbranch_scc1 .Lnononce")
    srd(SDBG, 36, None, 256)
    e("s_bfe_u32 s10, s72, 0x70004")
    e("s_bfe_u32 s8, s72, 0x7000b")
    e("s_lshl_b32 s8, s8, 8")
    e("s_or_b32 s10, s10, s8")
    e("s_bfe_u32 s8, s72, 0x70012")
    e("s_lshl_b32 s8, s8, 16")
    e("s_or_b32 s10, s10, s8")
    e("s_bfe_u32 s8, s72, 0x60019")
    e("s_lshl_b32 s8, s8, 24")
    e("s_or_b32 s10, s10, s8")
    e("s_or_b32 s10, s10, 0x80808080")
    e("v_mov_b32 v6, s10")
    e("s_mov_b64 exec, 1")
    e(f"buffer_store_dword v6, v18, s[{SDBG}:{SDBG + 3}], 0 offen sc1")
    e("s_mov_b64 exec, -1")
    e.label(".Lnononce")
    xloads()
    srd(SW, 22, "s7", 79 * 12288 + 128)
    e("s_mov_b32 s7, 0")
    for t in range(10):
        e(f"buffer_load_dwordx4 v[{DAT + 4 * t}:{DAT + 4 * t + 3}], v5, s[{SW}:{SW + 3}], s7 offen{POL}")
        if t < 9:
            e("s_add_u32 s7, s7, 12288")
        if t == hpre - 1:
            e("s_barrier")
    srd(SWS, 38, None, WS_USED)
    srd(SDBG, 36, None, 256)
    e("s_cmp_lg_u32 s3, 0")
    e("s_cbranch_scc1 .Lnozf")
    for r in range(4):
        e(f"v_mov_b32 v{20 + r}, 0")
    e("s_lshl_b32 s7, s6, 10")
    e(f"s_add_u32 s7, s7, {OP}")
    e(f"buffer_store_dwordx4 v[20:23], v1, {WSR}, s7 offen")
    e.label(".Lnozf")
    if nearly:
        e(f"buffer_load_dword v19, v18, s[{SDBG}:{SDBG + 3}], 0 offen sc1")
    selectors(5, 6, 7)
    layernorm(10 + nearly)
    if not nearly:
        e(f"buffer_load_dword v19, v18, s[{SDBG}:{SDBG + 3}], 0 offen sc1")
    stamp(1)
    D = 84
    for t in range(10):
        buildA(PP + t)
        e(f"s_waitcnt vmcnt({10 - t})")
        mfma(D, A, DAT + 4 * t, t == 0)
    stamp(2)
    if floor:
        stamps_flush(8)
        e("s_endpgm")
    combine_halves(D, 88, 92)
    e("v_and_b32 v17, 15, v0")
    e("v_lshlrev_b32 v17, 5, v17")
    e("v_lshrrev_b32 v6, 4, v0")
    e("v_lshl_add_u32 v17, v6, 4, v17")
    e("s_lshl_b32 s10, s3, 16")
    e("s_lshl_b32 s7, s6, 8")
    e("s_add_u32 s10, s10, s7")
    e(f"s_add_u32 s11, s10, {BOFF}")
    e("s_lshl_b32 s9, s4, 9")
    e("s_lshl_b32 s7, s3, 7")
    e("s_add_u32 s9, s9, s7")
    e(f"s_add_u32 s9, s9, {QID}")
    e("s_lshl_b32 s7, s5, 4")
    e("s_add_u32 s7, s7, s9")
    e("s_sub_u32 s7, s7, s10")
    e("v_writelane_b32 v17, s7, 8")
    for r in range(4):
        e(f"v_writelane_b32 v{D + r}, s66, 8")
    e("s_lshl_b32 s8, s3, 16")
    e("s_lshl_b32 s7, s4, 11")
    e("s_add_u32 s8, s8, s7")
    e("v_mov_b32 v16, v4")
    if mlwarm:
        e("s_lshl_b32 s7, s3, 7")
        e("s_sub_u32 s7, 384, s7")
        e("v_writelane_b32 v16, s7, 8")
    nonce_wait(19, "q")
    for r in range(4):
        tag(D + r, D + r, NS[r])
    stamp(3)
    e("s_mov_b64 exec, 0x00ff01ff")
    e(f"buffer_store_dwordx4 v[{D}:{D + 3}], v17, {WSR}, s10 offen")
    e("s_mov_b64 exec, -1")
    def q_storeB():
        e("s_mov_b64 exec, 0x00ff01ff")
        e(f"buffer_store_dwordx4 v[{D}:{D + 3}], v17, {WSR}, s11 offen sc1")
        e("s_mov_b64 exec, -1")
    e("v_mov_b32 v15, v1")
    if qs0:
        e(f"s_sleep {qs0}")
    e.label(".Lqg")
    e(f"buffer_load_dwordx4 v[{DAT}:{DAT + 3}], v15, {WSR}, s8 offen sc1")
    e(f"buffer_load_dwordx4 v[{DAT + 4}:{DAT + 7}], v15, {WSR}, s8 offen offset:1024 sc1")
    e(f"s_mov_b64 exec, {'0x1ff' if mlwarm else '0xff'}")
    e(f"buffer_load_dwordx4 v[{DAT + 8}:{DAT + 11}], v16, {WSR}, s9 offen sc1")
    e("s_mov_b64 exec, 0xff")
    e("s_waitcnt vmcnt(0)")
    tags_ok([(DAT + 8 + k, NS[k]) for k in range(4)], 5, ".Lqg_id")
    e("s_mov_b64 exec, -1")
    e("s_branch .Lqg_re")
    e.label(".Lqg_id")
    e("s_mov_b64 exec, -1")
    tags_ok([(DAT + k, NS[k % 4]) for k in range(8)], 5, ".Lqg_ok")
    e.label(".Lqg_re")
    e(f"s_sleep {qs1}")
    fallback_retry("q", ".Lqg", [15, 16], q_storeB)
    e.label(".Lqg_ok")
    e("s_mov_b64 exec, 0xff")
    xcc_check("q", DAT + 8, 5, q_storeB)
    e("s_mov_b64 exec, -1")
    untag(range(DAT, DAT + 8))
    for r in range(4):
        e(f"v_add_f32 v{DAT + r}, v{DAT + r}, v{DAT + 4 + r}")
    rows_sum4(DAT, DAT + 4)
    e(f"v_cvt_pk_bf16_f32 v6, v{DAT}, v{DAT + 1}")
    e(f"v_cvt_pk_bf16_f32 v7, v{DAT + 2}, v{DAT + 3}")
    e("s_lshl_b32 s7, s3, 7")
    e("v_and_b32 v5, 15, v0")
    e("v_lshlrev_b32 v5, 3, v5")
    e("v_add_u32 v5, s7, v5")
    e(f"ds_write_b64 v5, v[6:7] offset:{QBUF}")
    e("v_mov_b32 v5, s83")
    e(f"ds_write_b32 v18, v5 offset:{QFL + 12}")
    e("s_lshl_b32 s7, s3, 2")
    e("v_mov_b32 v6, s7")
    e("v_mov_b32 v5, s81")
    e("s_waitcnt lgkmcnt(0)")
    e(f"ds_write_b32 v6, v5 offset:{QFL}")
    stamp(4)

    SO_ = 48
    e("s_lshl_b32 s75, s4, 13")
    e("s_lshl_b32 s7, s5, 4")
    e("s_add_u32 s75, s75, s7")
    e(f"s_add_u32 s75, s75, {OP}")
    e("s_add_u32 s75, s75, s83")
    e("s_lshl_b32 s76, s4, 9")
    e("s_add_u32 s76, s76, s7")
    e(f"s_add_u32 s76, s76, {QID + 384}")
    e("s_add_u32 s76, s76, s83")
    e("s_lshl_b32 s7, s3, 6")
    e("v_add_u32 v24, s7, v0")
    e("v_mul_u32_u24 v22, 0x5556, v24")
    e("v_lshrrev_b32 v22, 16, v22")
    e("v_mul_u32_u24 v21, 3, v22")
    e("v_sub_u32 v21, v24, v21")
    e("v_lshlrev_b32 v22, 7, v22")
    e("v_lshl_add_u32 v22, v21, 2, v22")
    e("v_lshlrev_b32 v21, 3, v21")
    e("v_lshrrev_b32 v30, v21, s81")
    e("v_lshlrev_b32 v24, 2, v24")
    e("s_mov_b32 s70, 0")
    e("s_cmp_lg_u32 s3, 0")
    e("s_cbranch_scc1 .Lnoz")
    e("s_and_b32 s74, s6, 31")
    e("s_cmp_ge_u32 s74, 10")
    e("s_cbranch_scc1 .Lnoz")
    e("s_mov_b32 s70, 1")
    e("s_lshr_b32 s7, s6, 5")
    e("s_mul_i32 s8, s7, 160")
    e("s_lshl_b32 s9, s74, 4")
    e("s_add_u32 s8, s8, s9")
    e("v_and_b32 v5, 1, v0")
    e("v_lshlrev_b32 v25, 3, v5")
    e("v_bfe_u32 v6, v0, 4, 1")
    e("v_lshl_add_u32 v25, v6, 2, v25")
    e("v_lshrrev_b32 v6, 5, v0")
    e("v_lshl_add_u32 v25, v6, 1, v25")
    e("v_add_u32 v25, s8, v25")
    e("s_lshl_b32 s9, s8, 6")
    e(f"s_add_u32 s73, s9, {ZP}")
    if ylay:
        e(f"s_add_u32 s71, s9, {YP}")
        e("v_mov_b32 v28, v1")
    else:
        e("v_lshrrev_b32 v28, 1, v0")
        e("v_mul_u32_u24 v28, 3072, v28")
        e("v_lshl_add_u32 v28, v5, 4, v28")
        e("s_mul_i32 s71, s7, 384")
        e("s_lshl_b32 s9, s74, 5")
        e("s_add_u32 s71, s71, s9")
        e(f"s_add_u32 s71, s71, {YP}")
    e("s_mov_b32 s78, 0x00030003")
    e("s_mov_b32 s79, 0x00030003")
    srd(SO_, 34, None, 1280)
    e.label(".Lnoz")
    e("s_cmp_eq_u32 s83, 0")
    e("s_cbranch_scc1 .Lnozb")
    e("s_cmp_lg_u32 s3, 2")
    e("s_cbranch_scc1 .Lnozb")
    for r in range(4):
        e(f"v_mov_b32 v{64 + r}, 0")
    e("v_lshlrev_b32 v12, 7, v0")
    e(f"buffer_store_dwordx4 v[64:67], v12, {WSR}, s75 offen sc1")
    e("s_waitcnt vmcnt(0)")
    e.label(".Lnozb")
    stamp(5)
    e.label(".Lms")
    for i in range(4):
        e(f"ds_read_b128 v[{40 + 4 * i}:{43 + 4 * i}], v18 offset:{MSL + 16 * i}")
    e("s_waitcnt lgkmcnt(0)")
    e("v_max3_u32 v19, v40, v41, v42")
    for i in range(6):
        e(f"v_max3_u32 v19, v19, v{43 + 2 * i}, v{44 + 2 * i}")
    e("v_max_u32 v19, v19, v55")
    e("v_cmp_eq_u32 vcc, -1, v19")
    e("s_cbranch_vccz .Lms_ok")
    e(f"s_sleep {mss}")
    spin_check(".Lms", 10)
    e.label(".Lms_ok")
    e("s_mov_b32 s80, 0")
    MX = 10
    e(f"v_max3_f32 v{MX}, v40, v41, v42")
    e(f"v_max3_f32 v{MX}, v{MX}, v43, v44")
    e(f"v_max3_f32 v{MX}, v{MX}, v45, v46")
    e(f"v_max_f32 v{MX}, v{MX}, v47")
    for i in range(8):
        e(f"v_sub_f32 v{40 + i}, v{40 + i}, v{MX}")
    for i in range(8):
        e(f"v_mul_f32 v{40 + i}, s67, v{40 + i}")
    for i in range(8):
        e(f"v_exp_f32 v{40 + i}, v{40 + i}")
    e("s_cmp_lg_u32 s3, 2")
    e("s_cbranch_scc1 .Lnol")
    e("v_mul_f32 v11, v40, v48")
    for i in range(1, 8):
        e(f"v_fmac_f32 v11, v{40 + i}, v{48 + i}")
    tag(56, 10, NS[0])
    tag(57, 11, NS[1])
    tag(58, 10, NS[2])
    tag(59, 11, NS[3])
    e("s_mov_b64 exec, 1")
    e("s_cmp_lg_u32 s83, 0")
    e("s_cbranch_scc1 .Lml_b")
    e(f"buffer_store_dwordx4 v[56:59], v18, {WSR}, s76 offen")
    e("s_branch .Lml_e")
    e.label(".Lml_b")
    e(f"buffer_store_dwordx4 v[56:59], v18, {WSR}, s76 offen sc1")
    e.label(".Lml_e")
    e("s_lshl_b32 s7, s5, 4")
    e("s_sub_u32 s76, s76, s7")
    e("s_mov_b64 exec, 0xff")
    e.label(".Lml")
    e(f"buffer_load_dwordx4 v[60:63], v4, {WSR}, s76 offen sc1")
    e("s_waitcnt vmcnt(0)")
    tags_ok([(60 + k, NS[k]) for k in range(4)], 5, ".Lml_ok")
    e(f"s_sleep {mlp}")
    spin_check(".Lml")
    e.label(".Lml_ok")
    e("s_mov_b32 s80, 0")
    untag([60, 61])
    e("v_mov_b32 v62, v60")
    for pat in P8:
        e(f"v_max_f32_dpp v62, v62, v62 {pat} {DPPM}")
    e("v_sub_f32 v60, v60, v62")
    e(f"v_sub_f32 v62, v{MX}, v62")
    e("v_mul_f32 v60, s67, v60")
    e("v_mul_f32 v62, s67, v62")
    e("v_exp_f32 v60, v60")
    e("v_exp_f32 v62, v62")
    e("v_mul_f32 v60, v60, v61")
    for pat in P8:
        e(f"v_add_f32_dpp v60, v60, v60 {pat} {DPPM}")
    e("v_rcp_f32 v60, v60")
    e("v_mul_f32 v60, v60, v62")
    e(f"ds_write_b32 v18, v60 offset:{VCN + 4}")
    e("s_mov_b64 exec, -1")
    e.label(".Lnol")
    e("s_cmp_eq_u32 s70, 0")
    e("s_cbranch_scc1 .Lnozl")
    e(f"buffer_load_ushort v26, v25, s[{SX}:{SX + 3}], 0 offen")
    e(f"buffer_load_dwordx4 v[100:103], v1, {WSR}, s73 offen sc1")
    e.label(".Lnozl")
    if ylay:
        e("s_mul_i32 s77, s5, 10240")
        e("s_lshl_b32 s7, s4, 5")
        e("s_add_u32 s77, s77, s7")
        e(f"s_add_u32 s77, s77, {YP}")
        e("v_lshrrev_b32 v23, 1, v0")
        e("v_lshlrev_b32 v23, 10, v23")
        e("v_and_b32 v5, 1, v0")
        e("v_lshl_add_u32 v23, v5, 4, v23")
    else:
        e("s_mul_i32 s77, s6, 384")
        e(f"s_add_u32 s77, s77, {YP}")
        e("v_mov_b32 v23, v1")
    e("s_cmp_lg_u32 s83, 0")
    e("s_waitcnt lgkmcnt(0)")
    e("s_barrier")
    e(f"ds_read_b32 v81, v18 offset:{VCN + 4}")
    for p in range(8):
        e(f"ds_read2st64_b32 v[{64 + 2 * p}:{65 + 2 * p}], v24 offset0:{OPART // 256 + 6 * p} offset1:{OPART // 256 + 6 * p + 3}")
    for p in range(8):
        e(f"s_waitcnt lgkmcnt({7 - p})")
        e(f"v_add_f32 v{64 + 2 * p}, v{64 + 2 * p}, v{65 + 2 * p}")
        if p < 2:
            e(f"v_mul_f32 v{82 + p}, v{40 + p}, v{64 + 2 * p}")
        else:
            e(f"v_fmac_f32 v{82 + p % 2}, v{40 + p}, v{64 + 2 * p}")
    e("v_add_f32 v80, v82, v83")
    e("v_mul_f32 v80, v80, v81")
    tag(80, 80, "v30")
    e("s_cbranch_scc1 .Lo_b", safe_branch=True)
    e(f"buffer_store_dword v80, v22, {WSR}, s75 offen")
    e.label(".Lo_e")
    stamp(6)
    e("s_cmp_eq_u32 s3, 1")
    e("s_cbranch_scc1 .Lyred")
    e("s_cmp_eq_u32 s70, 0")
    e("s_cbranch_scc1 .Lfin_stamp")
    e("s_waitcnt vmcnt(1)")
    tags_ok([(100 + r, NS[r]) for r in range(4)], 5, ".Lzg_ok")
    e("s_barrier")
    e("s_mov_b32 s70, 2")
    e.label(".Lzg")
    e(f"buffer_load_dwordx4 v[100:103], v1, {WSR}, s73 offen sc1")
    e("s_waitcnt vmcnt(0)")
    tags_ok([(100 + r, NS[r]) for r in range(4)], 5, ".Lzg_ok")
    spin_check(".Lzg")
    e.label(".Lzg_ok")
    e("s_mov_b32 s80, 0")
    untag(range(100, 104))
    col_sum(100)
    bf16r(100, 104)
    e("v_mul_f32 v104, s67, v100")
    e("v_exp_f32 v104, -v104")
    e("v_add_f32 v104, 1.0, v104")
    e("v_rcp_f32 v105, v104")
    e("v_mul_f32 v106, v100, v105")
    e("v_fma_f32 v107, -v106, v104, v100")
    e("v_fma_f32 v107, v107, v105, v106")
    e("v_cmp_o_f32 vcc, v107, v107")
    e("v_cndmask_b32 v100, v106, v107, vcc")
    bf16r(100, 104)
    e("v_lshlrev_b32 v108, 16, v26")
    e("s_cmp_eq_u32 s70, 2")
    e("s_cbranch_scc1 .Lyg")
    e("s_barrier")
    e.label(".Lyg")
    if ppy:
        e(f"buffer_load_dwordx4 v[92:95], v28, {WSR}, s71 offen sc1")
        e(f"s_sleep {ppy}")
        e.label(".Lyg1")
        e(f"buffer_load_dwordx4 v[96:99], v28, {WSR}, s71 offen sc1")
        e("s_waitcnt vmcnt(1)")
        tags_ok([(92 + r, NS[r]) for r in range(4)], 5, ".Lyg_ok")
        e(f"buffer_load_dwordx4 v[92:95], v28, {WSR}, s71 offen sc1")
        e("s_waitcnt vmcnt(1)")
        tags_ok([(96 + r, NS[r]) for r in range(4)], 5, ".Lyg_okb")
        spin_check(".Lyg1")
        e.label(".Lyg_okb")
        for k in range(4):
            e(f"v_and_b32 v{84 + k}, 0xffffff00, v{96 + k}")
        e("s_branch .Lyg_c")
    else:
        e(f"buffer_load_dwordx4 v[92:95], v28, {WSR}, s71 offen sc1")
        e("s_waitcnt vmcnt(0)")
        tags_ok([(92 + r, NS[r]) for r in range(4)], 5, ".Lyg_ok")
        spin_check(".Lyg")
    e.label(".Lyg_ok")
    for k in range(4):
        e(f"v_and_b32 v{84 + k}, 0xffffff00, v{92 + k}")
    e.label(".Lyg_c")
    col_sum(84)
    bf16r(84, 88)
    e("v_mul_f32 v84, v84, v100")
    bf16r(84, 88)
    e("v_add_f32 v84, v84, v108")
    e("v_cvt_pk_bf16_f32 v88, v84, v84")
    e("s_mov_b64 exec, s[78:79]")
    e(f"buffer_store_short v88, v25, s[{SO_}:{SO_ + 3}], 0 offen")
    if spank:
        e("s_cmp_lg_u32 s2, 0")
        e("s_cbranch_scc1 .Lfin_stamp")
        e("s_memrealtime s[8:9]")
        e("s_waitcnt lgkmcnt(0)")
        e("s_sub_u32 s10, s8, s72")
        e(f"s_mul_i32 s10, s10, {spank}")
        e("s_add_u32 s10, s10, s8")
        e.label(".Lspank")
        e("s_memrealtime s[8:9]")
        e("s_waitcnt lgkmcnt(0)")
        e("s_sub_u32 s11, s8, s10")
        e("s_cmp_lt_i32 s11, 0")
        e("s_cbranch_scc1 .Lspank")
    e.label(".Lfin_stamp")
    stamp(7)
    stamps_flush(8)
    e("s_endpgm")
    e.label(".Lo_b")
    e(f"buffer_store_dword v80, v22, {WSR}, s75 offen sc1")
    e("s_branch .Lo_e")
    e.label(".Lyred")
    e("s_mov_b64 exec, 0xfffff")
    if stamps:
        e("s_waitcnt lgkmcnt(0)")
    e("s_barrier")
    for p in range(8):
        e(f"ds_read_b128 v[{84 + 4 * p}:{87 + 4 * p}], v1 offset:{YPART + 384 * p}")
    for p in range(1, 8, 2):
        e(f"s_waitcnt lgkmcnt({7 - p})")
        for r in range(4):
            e(f"v_add_f32 v{80 + 4 * p + r}, v{80 + 4 * p + r}, v{84 + 4 * p + r}")
        if p == 3 or p == 7:
            for r in range(4):
                e(f"v_add_f32 v{72 + 4 * p + r}, v{72 + 4 * p + r}, v{80 + 4 * p + r}")
    for r in range(4):
        e(f"v_add_f32 v{84 + r}, v{84 + r}, v{100 + r}")
    for r in range(4):
        tag(84 + r, 84 + r, NS[r])
    e(f"buffer_store_dwordx4 v[84:87], v23, {WSR}, s77 offen sc1")
    e("s_branch .Lfin_stamp")

    e.label(".Lffn")
    helper_common()
    G0, U0, W0 = DAT, DAT + 40, 120
    e("s_and_b32 s68, s6, 15")
    e("s_lshr_b32 s69, s6, 4")
    e("v_lshrrev_b32 v42, 4, v0")
    e("v_and_b32 v43, 15, v0")
    e("v_mul_u32_u24 v3, 20, v42")
    e("s_mul_i32 s7, s68, 80")
    e("v_add_u32 v3, s7, v3")
    e("s_mul_i32 s7, s68, 122880")
    e("s_mul_i32 s8, s69, 192")
    e("s_add_u32 s7, s7, s8")
    e("v_mul_u32_u24 v5, 30720, v42")
    e("v_lshl_add_u32 v5, v43, 4, v5")
    e("v_cmp_gt_u32 vcc, 12, v43")
    e("v_mov_b32 v6, 0x7ffffff0")
    e("v_cndmask_b32 v5, v6, v5, vcc")
    if st0:
        stamp(5)
    e("s_waitcnt lgkmcnt(0)")
    if st0:
        stamp(6)
    xloads()
    srd(SW, 28, "s7", 39 * 3072 + 192)
    srd(SU, 30, "s7", 39 * 3072 + 192)
    e("s_mov_b32 s7, 0")
    for t in range(10):
        e(f"buffer_load_dwordx4 v[{G0 + 4 * t}:{G0 + 4 * t + 3}], v5, s[{SW}:{SW + 3}], s7 offen{POL}")
        e(f"buffer_load_dwordx4 v[{U0 + 4 * t}:{U0 + 4 * t + 3}], v5, s[{SU}:{SU + 3}], s7 offen{POL}")
        if t < 9:
            e("s_add_u32 s7, s7, 3072")
        if t == hpre // 2 - 1:
            e("s_barrier")
    srd(SWS, 38, None, WS_USED)
    srd(SDBG, 36, None, 256)
    if nearly:
        e(f"buffer_load_dword v19, v18, s[{SDBG}:{SDBG + 3}], 0 offen sc1")
    selectors(5, 7, 8)
    layernorm(20 + nearly)
    if not nearly:
        e(f"buffer_load_dword v19, v18, s[{SDBG}:{SDBG + 3}], 0 offen sc1")
    stamp(1)
    DG, DU = 10, 14
    for t in range(10):
        buildA(PP + t)
        e(f"s_waitcnt vmcnt({21 - 2 * t - 1})")
        mfma(DG, A, G0 + 4 * t, t == 0)
        e(f"s_waitcnt vmcnt({21 - 2 * t - 2})")
        mfma(DU, A, U0 + 4 * t, t == 0)
    stamp(2)
    e("v_lshlrev_b32 v40, 6, v43")
    e("v_and_b32 v6, 1, v42")
    e("v_lshl_add_u32 v40, v6, 5, v40")
    e("v_lshrrev_b32 v6, 1, v42")
    e("v_lshl_add_u32 v40, v6, 4, v40")
    e("s_mul_i32 s10, s6, 768")
    e(f"s_add_u32 s10, s10, {GU - GID}")
    e("v_add_u32 v40, s10, v40")
    e("s_lshl_b32 s7, s6, 4")
    e("v_writelane_b32 v40, s7, 12")
    e(f"s_mov_b32 s10, {GID}")
    e(f"s_mov_b32 s11, {GID + BOFF}")
    e("s_mov_b32 s78, 0")
    e("s_mov_b32 s79, -1")
    e(f"v_cndmask_b32 v60, v{DG}, v{DG + 2}, s[78:79]")
    e(f"v_cndmask_b32 v61, v{DU}, v{DU + 2}, s[78:79]")
    e(f"v_cndmask_b32 v62, v{DG + 1}, v{DG + 3}, s[78:79]")
    e(f"v_cndmask_b32 v63, v{DU + 1}, v{DU + 3}, s[78:79]")
    for r in range(4):
        e(f"v_writelane_b32 v{60 + r}, s66, 12")
    e("s_mov_b32 s78, 0x0fff1fff")
    e("s_mov_b32 s79, 0x0fff0fff")
    if floor:
        e("s_branch .Lffn_down")
    nonce_wait(19, "f")
    for r in range(4):
        tag(60 + r, 60 + r, NS[r])
    stamp(3)
    def f_store(so, pol):
        e("s_mov_b64 exec, s[78:79]")
        e(f"buffer_store_dwordx4 v[60:63], v40, {WSR}, {so} offen{pol}")
        e("s_mov_b64 exec, -1")
    f_store("s10", "")
    def f_storeB():
        f_store("s11", " sc1")
    e.label(".Lffn_down")
    e("s_mul_i32 s7, s4, 61440")
    e("s_mul_i32 s8, s5, 160")
    e("s_add_u32 s7, s7, s8")
    srd(SD, 32, "s7", 47 * 1280 + 160)
    e("v_mul_u32_u24 v5, 15360, v42")
    e("v_lshl_add_u32 v5, v43, 4, v5")
    e("v_cmp_gt_u32 vcc, 10, v43")
    e("v_mov_b32 v6, 0x7ffffff0")
    e("v_cndmask_b32 v5, v6, v5, vcc")
    e("s_mov_b32 s7, 0")
    for qq in range(12):
        e(f"buffer_load_dwordx4 v[{W0 + 4 * qq}:{W0 + 4 * qq + 3}], v5, s[{SD}:{SD + 3}], s7 offen{POL}")
        if qq < 11:
            e("s_add_u32 s7, s7, 1280")
    if floor:
        e("s_waitcnt vmcnt(0)")
        stamp(4)
        stamps_flush(8)
        e("s_endpgm")
    e("s_mul_i32 s8, s69, 12288")
    e("s_and_b32 s7, s4, 1")
    e("s_mul_i32 s7, s7, 384")
    e("s_add_u32 s8, s8, s7")
    e(f"s_add_u32 s8, s8, {GU}")
    for i in range(1, 4):
        e(f"s_add_u32 s{72 + i}, s8, {3072 * i}")
    e("s_lshl_b32 s9, s69, 8")
    e(f"s_add_u32 s9, s9, {GID}")
    e("v_and_b32 v9, 31, v0")
    e("v_min_u32 v9, 23, v9")
    e("v_lshrrev_b32 v6, 5, v0")
    e("v_mul_u32_u24 v5, 768, v6")
    e("v_lshl_add_u32 v5, v9, 4, v5")
    e("v_lshlrev_b32 v41, 4, v43")
    if gs0:
        e(f"s_sleep {gs0}")
    e.label(".Lgg")
    for i in range(8):
        so = "s8" if i < 2 else f"s{72 + i // 2}"
        e(f"buffer_load_dwordx4 v[{68 + 4 * i}:{71 + 4 * i}], v5, {WSR}, {so} offen offset:{(i % 2) * 1536} sc1")
    e("s_mov_b64 exec, 0xffff")
    e(f"buffer_load_dwordx4 v[100:103], v41, {WSR}, s9 offen sc1")
    e("s_waitcnt vmcnt(0)")
    tags_ok([(100 + k, NS[k]) for k in range(4)], 6, ".Lgg_id")
    e("s_mov_b64 exec, -1")
    e("s_branch .Lgg_re")
    e.label(".Lgg_id")
    e("s_mov_b64 exec, -1")
    tags_ok([(68 + k, NS[k % 4]) for k in range(32)], 6, ".Lgg_ok")
    e.label(".Lgg_re")
    e(f"s_sleep {qs1}")
    fallback_retry("f", ".Lgg", [5, 41], f_storeB)
    e.label(".Lgg_ok")
    e("s_mov_b64 exec, 0xffff")
    xcc_check("f", 100, 6, f_storeB)
    e("s_mov_b64 exec, -1")
    untag(range(68, 100))
    for i in range(1, 8):
        for r in range(4):
            e(f"v_add_f32 v{68 + r}, v{68 + r}, v{68 + 4 * i + r}")
    for r in range(4):
        e(f"v_mov_b32 v{72 + r}, v{68 + r}")
    for r in range(4):
        e(f"v_permlane32_swap_b32 v{68 + r}, v{72 + r}")
    for r in range(4):
        e(f"v_add_f32 v{68 + r}, v{68 + r}, v{72 + r}")
    round4(68, 72)
    e("v_mul_f32 v68, v68, v69")
    e("v_mul_f32 v70, v70, v71")
    e("v_cvt_pk_bf16_f32 v6, v68, v70")
    e("v_lshlrev_b32 v5, 2, v9")
    e(f"ds_write_b32 v5, v6 offset:{HBUF}")
    e("v_mul_u32_u24 v5, 24, v42")
    e("s_waitcnt lgkmcnt(0)")
    for i in range(3):
        e(f"ds_read_b64 v[{70 + 2 * i}:{71 + 2 * i}], v5 offset:{HBUF + 8 * i}")
    e("s_waitcnt lgkmcnt(0)")
    DZ = 10
    for qq in range(12):
        src = 70 + qq // 2
        if qq % 2 == 0:
            e(f"v_and_b32 v6, 0xffff, v{src}")
        else:
            e(f"v_lshrrev_b32 v6, 16, v{src}")
        buildA(6)
        mfma(DZ, A, W0 + 4 * qq, qq == 0)
    e("v_lshlrev_b32 v5, 10, v43")
    e("v_lshl_add_u32 v5, v42, 4, v5")
    e("s_mul_i32 s8, s5, 10240")
    e("s_lshl_b32 s7, s4, 5")
    e("s_add_u32 s8, s8, s7")
    e(f"s_add_u32 s8, s8, {ZP}")
    for r in range(4):
        tag(DZ + r, DZ + r, NS[r])
    e("s_mov_b64 exec, 0x03ff03ff")
    e(f"buffer_store_dwordx4 v[{DZ}:{DZ + 3}], v5, {WSR}, s8 offen sc1")
    stamp(4)
    stamps_flush(5)
    e("s_endpgm")

    e.label(".Lkv")
    common()
    SK, SV, SO = 40, 44, 48
    K0, V0, WO, S0 = 40, 88, 136, 8
    QR = [160, 164, 20]
    if st0:
        stamp(2)
    e("s_sub_u32 s64, s3, 4")
    e("v_mul_u32_u24 v3, 384, v2")
    e("v_add_u32 v3, v3, v4")
    e("s_mul_i32 s7, s4, 3145728")
    e("s_mul_i32 s8, s5, 98304")
    e("s_add_u32 s7, s7, s8")
    e("s_mul_i32 s8, s64, 12288")
    e("s_add_u32 s7, s7, s8")
    e(f"s_add_u32 s7, s7, {6144 * 384}")
    ra, rb, rc, rd = [int(ch) for ch in str(rot)[1:]]
    e(f"s_mul_i32 s8, s64, {ra}")
    if rb:
        e(f"s_mul_i32 s9, s5, {rb}")
        e("s_add_u32 s8, s8, s9")
    if rc:
        e(f"s_mul_i32 s9, s4, {rc}")
        e("s_add_u32 s8, s8, s9")
    if rd:
        e("s_lshr_b32 s9, s4, 2")
        e(f"s_mul_i32 s9, s9, {rd}")
        e("s_add_u32 s8, s8, s9")
    for t in range(4):
        e(f"s_add_u32 s9, s8, {t}")
        e("s_and_b32 s9, s9, 3")
        e(f"s_mul_i32 s{74 + t}, s9, 3072")
    e("s_cmp_lg_u32 s3, 11")
    e("s_cbranch_scc1 .Lnoinit")
    e("v_min_u32 v5, 20, v0")
    e("v_lshlrev_b32 v5, 2, v5")
    e("v_mov_b32 v6, -1")
    e(f"ds_write_b32 v5, v6 offset:{MSL}")
    e.label(".Lnoinit")
    e("s_waitcnt lgkmcnt(0)")
    if st0:
        stamp(3)
    srd(SK, 18, "s7", 12288)
    if touch:
        e("s_cmp_lg_u32 s3, 10")
        e("s_cbranch_scc1 .Lnotouch")
        e("s_mov_b64 exec, 1")
        srd(SV, 20, "s7", 12288)
        e(f"buffer_load_dword v8, v18, s[{SV}:{SV + 3}], 0 offen nt")
        e("s_mul_i32 s8, s4, 245760")
        srd(SO, 24, "s8", 245760)
        e(f"buffer_load_dword v9, v18, s[{SO}:{SO + 3}], 0 offen nt")
        e("s_mul_i32 s8, s4, 61440")
        srd(SO, 32, "s8", 61440)
        e(f"buffer_load_dword v10, v18, s[{SO}:{SO + 3}], 0 offen nt")
        srd(SWS, 38, None, WS_USED)
        e(f"s_mov_b32 s8, {WS_USED - 4096}")
        e(f"buffer_load_dword v11, v18, {WSR}, s8 offen nt")
        srd(SO, 34, None, 1280)
        e(f"buffer_load_dword v12, v18, s[{SO}:{SO + 3}], 0 offen nt")
        e("s_mov_b64 exec, -1")
        e.label(".Lnotouch")

    def side_work(n):
        if n == kvpre:
            e("s_barrier")
        if n == TH:
            srd(SV, 20, "s7", 12288)
            srd(SWS, 38, None, WS_USED)
            e("v_and_b32 v1, 15, v0")
            e("v_lshrrev_b32 v2, 4, v0")
            e("v_mul_u32_u24 v6, 7680, v2")
            e("v_lshl_add_u32 v6, v1, 4, v6")
            e("v_cmp_gt_u32 vcc, 10, v1")
            e("v_mov_b32 v7, 0x7ffffff0")
            e("v_cndmask_b32 v6, v7, v6, vcc")
            e("s_mul_i32 s7, s4, 245760")
            e("s_mul_i32 s8, s64, 30720")
            e("s_add_u32 s7, s7, s8")
            e("s_mul_i32 s8, s5, 160")
            e("s_add_u32 s7, s7, s8")
            srd(SO, 24, "s7", 23 * 1280 + 160)
            e("s_movk_i32 s66, 3840")
            selectors(7, 8, 9)
            e("v_lshrrev_b32 v16, 5, v0")
            e("v_mul_u32_u24 v16, 768, v16")
            e("v_lshl_add_u32 v16, v4, 1, v16")
            e("v_and_b32 v13, 1, v2")
            e("v_lshl_add_u32 v16, v13, 4, v16")
            e("s_mul_i32 s7, s64, 1536")
            e("v_add_u32 v16, s7, v16")
            e("s_lshl_b32 s7, s64, 2")
            e("v_mov_b32 v17, s7")
            e("v_lshlrev_b32 v14, 4, v0")
            e("s_lshl_b32 s69, s4, 13")
            e("s_lshl_b32 s7, s64, 10")
            e("s_add_u32 s69, s69, s7")
            e(f"s_add_u32 s69, s69, {OP}")
            e("v_lshlrev_b32 v19, 5, v1")
            e("v_lshl_add_u32 v19, v2, 4, v19")
            e("s_mul_i32 s7, s64, 384")
            e("v_add_u32 v19, s7, v19")
            e("s_mov_b32 s78, 0x00ff00ff")
            e("s_mov_b32 s79, 0xff00ff00")
            e(f"s_mov_b32 s70, 0x{f2u(192.0 ** -0.5):08x}")
            if xb:
                packed = sum(int(ch) << (4 * i) for i, ch in enumerate(f"{xb:08d}"))
                e("s_lshr_b32 s8, s4, 2")
                e("s_lshl_b32 s8, s8, 2")
                e(f"s_lshr_b32 s72, 0x{packed:08x}, s8")
                e("s_and_b32 s72, s72, 15")
    MX, AP, O = 12, 40, 56

    def chunkA():
        e.label(".Lqs")
        e(f"ds_read_b128 v[36:39], v18 offset:{QFL}")
        for r3 in range(3):
            e(f"ds_read_b128 v[{QR[r3]}:{QR[r3] + 3}], v4 offset:{QBUF + 128 * r3}")
        e("s_waitcnt lgkmcnt(0)")
        e("v_max3_u32 v13, v36, v37, v38")
        e("v_cmp_eq_u32 vcc, -1, v13")
        e("s_cbranch_vccz .Lqs_ok")
        e("s_sleep 2")
        spin_check(".Lqs", 10)
        e.label(".Lqs_ok")
        e("s_mov_b32 s80, 0")
        e("v_readfirstlane_b32 s81, v36")
        e("v_add_u32 v14, v14, v39")
        stamp(2)
        for i in range(12):
            for t in range(4):
                q = QR[i // 4] + i % 4
                if i == 0:
                    e(f"v_dot2_f32_bf16 v{S0 + t}, v{K0 + 12 * t + i}, v{q}, 0")
                else:
                    e(f"v_dot2_f32_bf16 v{S0 + t}, v{K0 + 12 * t + i}, v{q}, v{S0 + t}")
        nonce_regs()

    def chunkB():
        for pat in P8:
            for t in range(4):
                e(f"v_add_f32_dpp v{S0 + t}, v{S0 + t}, v{S0 + t} {pat} {DPPM}")
        stamp(3)
        round4(S0, 36)
        for t in range(4):
            e(f"v_mul_f32 v{S0 + t}, s70, v{S0 + t}")
        round4(S0, 36)
        e(f"v_max3_f32 v{MX}, v{S0}, v{S0 + 1}, v{S0 + 2}")
        e(f"v_max_f32 v{MX}, v{MX}, v{S0 + 3}")
        e(f"v_max_f32_dpp v{MX}, v{MX}, v{MX} row_ror:8 {DPPM}")
        rows4(MX, "v_max_f32")
        e(f"v_min_u32 v13, -2, v{MX}")
        e(f"ds_write_b32 v17, v13 offset:{MSL}")

    def chunkC():
        for t in range(4):
            e(f"v_sub_f32 v{S0 + t}, v{S0 + t}, v{MX}")
        for t in range(4):
            e(f"v_mul_f32 v{S0 + t}, s67, v{S0 + t}")
        for t in range(4):
            e(f"v_exp_f32 v{S0 + t}, v{S0 + t}")
        e(f"v_add_f32 v13, v{S0}, v{S0 + 1}")
        e(f"v_add_f32 v13, v13, v{S0 + 2}")
        e(f"v_add_f32 v13, v13, v{S0 + 3}")
        for t in range(4):
            e(f"v_cvt_pk_bf16_f32 v{36 + t}, v{S0 + t}, v{S0 + t}")
        e(f"v_add_f32_dpp v13, v13, v13 row_ror:8 {DPPM}")
        rows4(13, "v_add_f32")
        e(f"v_min_u32 v13, -2, v13")
        e(f"ds_write_b32 v17, v13 offset:{LSL}")
        for t in range(4):
            buildA(36 + t, AP + 4 * t)
        stamp(4)

    def wo_load(a):
        r = WO + 4 * a
        e(f"buffer_load_dwordx4 v[{r}:{r + 3}], v6, s[{SO}:{SO + 3}], {'s66' if a >= 3 else '0'} offen offset:{1280 * (a % 3)}{POL}")

    kv = [("k", m) for m in range(12)] + [("v", m) for m in range(12)]
    if wo_mode == 0:
        seq = kv
        win = [TH] * 24
    elif wo_mode == 1:
        seq = kv[:12] + [("w", a) for a in range(6)] + kv[12:]
        win = [TH] * 12 + [TH + 1] + [TW] * 6 + [TH + 1] + [TH] * 10
    elif wo_mode == 2:
        seq = []
        for i in range(6):
            seq += kv[3 + 2 * i - 3 + 3: 3 + 2 * i + 2] if False else []
        seq = kv[:4]
        for i in range(6):
            seq += [("w", i)] + kv[4 + 2 * i: 6 + 2 * i]
        seq += kv[16:]
        win = [TH] * 5 + [TH + 1] * 17 + [TH] * 8
    pos = {x: n for n, x in enumerate(seq)}
    nq = pos[("v", nqk - 12)]
    landed = -1
    pv_done = 0
    for n, (kind, m) in enumerate(seq):
        side_work(n)
        xbmax = max(int(ch) for ch in f"{xb:08d}")
        if xb and xb0 <= n < xb0 + xbmax:
            lab = e.newlabel("Lk")
            e(f"s_waitcnt vmcnt({win[n]})")
            e(f"s_cmp_gt_u32 s72, {n - xb0}")
            e(f"s_cbranch_scc1 {lab}")
            e(f"s_waitcnt vmcnt({win[n] - 1})")
            e.label(lab)
            landed = max(landed, n - win[n] - 1)
        elif n >= win[n]:
            e(f"s_waitcnt vmcnt({win[n] - 1})")
            landed = max(landed, n - win[n])
        if kind == "w":
            wo_load(m)
        else:
            S, R0 = (SK, K0) if kind == "k" else (SV, V0)
            r = R0 + 4 * m
            e(f"buffer_load_dwordx4 v[{r}:{r + 3}], v3, s[{S}:{S + 3}], s{74 + m // 3} offen offset:{128 * (m % 3)}{POL}")
        if floor:
            if st0:
                if n == 3:
                    stamp(4)
            elif n in (6, 12, 18):
                stamp({6: 2, 12: 3, 18: 4}[n])
            continue
        if n == nq:
            assert landed >= pos[("k", 11)]
            chunkA()
        if n == nq + 1:
            chunkB()
        if n == nq + 2:
            chunkC()
        if n > nq + 2 or n == len(seq) - 1:
            while pv_done < 12 and pos[("v", pv_done)] <= landed:
                mfma(O + 4 * (pv_done % 3), AP + 4 * (pv_done // 3), V0 + 4 * pv_done, pv_done < 3)
                pv_done += 1
    NL = 6 if wo_mode == 0 else 0
    if wo_mode:
        wo_wait = TH
    stamp(1)
    if vrv:
        e("v_mov_b32 v13, 1")
        e("s_mov_b64 exec, 1")
        e(f"ds_add_u32 v18, v13 offset:{VCN}")
        e("s_mov_b64 exec, -1")
        e.label(".Lvr")
        e(f"ds_read_b32 v13, v18 offset:{VCN}")
        e("s_waitcnt lgkmcnt(0)")
        e(f"v_cmp_le_i32 vcc, {vrv - 1}, v13")
        e("s_cbranch_vccnz .Lvr_ok")
        e("s_sleep 1")
        spin_check(".Lvr", 10)
        e.label(".Lvr_ok")
        e("s_mov_b32 s80, 0")
    if wo_wait < TH:
        if not floor:
            while pv_done < 12 - wo_wait:
                e(f"s_waitcnt vmcnt({11 - pv_done})")
                if pv_done == 11 - wo_wait:
                    break
                mfma(O + 4 * (pv_done % 3), AP + 4 * (pv_done // 3), V0 + 4 * pv_done, pv_done < 3)
                pv_done += 1
        else:
            e(f"s_waitcnt vmcnt({wo_wait})")
    for qq in range(NL):
        wo_load(qq)
    if floor:
        e(f"s_waitcnt vmcnt({NL})")
        stamp(5)
        e("s_waitcnt vmcnt(0)")
        stamp(6)
        stamps_flush(7)
        e("s_endpgm")
    while pv_done < 12:
        e(f"s_waitcnt vmcnt({11 + NL - pv_done})")
        mfma(O + 4 * (pv_done % 3), AP + 4 * (pv_done // 3), V0 + 4 * pv_done, pv_done < 3)
        pv_done += 1
    e("s_mov_b64 exec, s[78:79]")
    for r3 in range(3):
        e(f"ds_write_b128 v16, v[{O + 4 * r3}:{O + 4 * r3 + 3}] offset:{OPART + 256 * r3}")
    e("s_mov_b64 exec, -1")
    stamp(5)
    e("s_waitcnt lgkmcnt(0)")
    e("s_barrier")
    if od:
        e(f"s_sleep {od}")
    if pp:
        e(f"buffer_load_dwordx3 v[64:66], v14, {WSR}, s69 offen sc1")
        e(f"s_sleep {pp}")
        e.label(".Log")
        e(f"buffer_load_dwordx3 v[68:70], v14, {WSR}, s69 offen sc1")
        e("s_waitcnt vmcnt(1)")
        tags_ok([(64 + k, NS[k]) for k in range(3)], 72, ".Log_ok")
        e(f"buffer_load_dwordx3 v[64:66], v14, {WSR}, s69 offen sc1")
        e("s_waitcnt vmcnt(1)")
        tags_ok([(68 + k, NS[k]) for k in range(3)], 72, ".Log_okb")
        spin_check(".Log")
        e.label(".Log_okb")
        for k in range(3):
            e(f"v_and_b32 v{76 + k}, 0xffffff00, v{68 + k}")
        e("s_branch .Log_c")
    else:
        e.label(".Log")
        e(f"buffer_load_dwordx3 v[64:66], v14, {WSR}, s69 offen sc1")
        e("s_waitcnt vmcnt(0)")
        tags_ok([(64 + k, NS[k]) for k in range(3)], 72, ".Log_ok")
        spin_check(".Log")
    e.label(".Log_ok")
    for k in range(3):
        e(f"v_and_b32 v{76 + k}, 0xffffff00, v{64 + k}")
    e.label(".Log_c")
    stamp(6)
    for pat in P8:
        for r in range(3):
            e(f"v_add_f32_dpp v{76 + r}, v{76 + r}, v{76 + r} {pat} {DPPM}")
    for r in range(3):
        e(f"v_cvt_pk_bf16_f32 v{76 + r}, v{76 + r}, 0")
    Y = 72
    buildA(76, 88)
    for r in range(3):
        e(f"v_mov_b32_dpp v{80 + r}, v{76 + r} row_ror:8 {DPPM}")
    src = [76, 77, 78, 80, 81, 82]
    for qq in range(6):
        if qq < 5:
            buildA(src[qq + 1], 92 + 4 * qq)
        mfma(Y, 88 + 4 * qq, WO + 4 * qq, qq == 0)
    e("s_mov_b64 exec, 0x03ff03ff")
    e(f"ds_write_b128 v19, v[{Y}:{Y + 3}] offset:{YPART}")
    e("s_waitcnt lgkmcnt(0)")
    e("s_barrier")
    stamp(7)
    stamps_flush(8)
    e.label(".Lend")
    e("s_endpgm")

    e.raw('.section .rodata,"a"')
    e.raw(".p2align 6")
    e.raw(f".amdhsa_kernel {NAME}_kernel")
    e.raw("  .amdhsa_next_free_vgpr 168")
    e.raw("  .amdhsa_next_free_sgpr 102")
    e.raw("  .amdhsa_accum_offset 168")
    e.raw("  .amdhsa_group_segment_fixed_size 0")
    e.raw("  .amdhsa_kernarg_size 96")
    e.raw("  .amdhsa_user_sgpr_count 2")
    e.raw("  .amdhsa_user_sgpr_kernarg_segment_ptr 1")
    e.raw("  .amdhsa_system_sgpr_workgroup_id_x 1")
    e.raw("  .amdhsa_float_denorm_mode_32 3")
    e.raw(".end_amdhsa_kernel")
    return e.text()


if __name__ == "__main__":
    import argparse, inspect
    ap = argparse.ArgumentParser()
    ap.add_argument("-o", default=f"cdna_kernels/{NAME}.s")
    sig = inspect.signature(gen)
    for nm, p in sig.parameters.items():
        if isinstance(p.default, bool):
            ap.add_argument("--" + nm, action="store_true")
        else:
            ap.add_argument("--" + nm, type=int, default=p.default)
    a = vars(ap.parse_args())
    o = a.pop("o")
    open(o, "w").write(gen(**a))
    print("wrote", o)
```

```python
import sys, struct
from asmlib import Emitter

NAME = "recurrent_scan__sliding_block_cached__glu_gated_bilinear__decode"

def f2u(f):
    return struct.unpack("<I", struct.pack("<f", f))[0]

QP = 0x0
QID = 0x30000
GID = 0x38000
GU = 0x40000
OP = 0x80000
BOFF = 0x100000
ZP = 0x200000
YP = 0x220000
WS_USED = 0x240000
STAMP = 0x300000
QBUF = 0
MSL = 384
LSL = 416
QFL = 448
VCN = 464
HBUF = 480
OPART = 1024
YPART = OPART + 16 * 768
LDS_BYTES = YPART + 8 * 384

SPIN_MAX = 200000
FALLBACK = 6
LOG2E = 1.4426950408889634


def gen(stamps=False, TH=3, floor=False, wo_late=6, badmap=0, qs0=40, qs1=16, gs0=60, mss=2, zs=16, rot=10100, spank=0, yb0=0, yb1=0, wo_pos=1, ylay=0, touch=0, nearly=1, kvpre=2, hpre=10, mlwarm=0, nqk=17, wo_wait=2, wo_mode=0, TW=5, osl=0, msl=0, ysl=0, vrv=0, od=6, mlp=4, xb=0, xb0=6, st0=0, pp=0, ppy=0, vopen=0, unev=0):
    e = Emitter()
    POL = " nt"
    hdr = open("cdna_kernels/%s.s.ref" % NAME).read().split("; Override launch")[0]
    e.raw(hdr.rstrip("\n"))
    for line in """
Fused single-launch kernel: 256 workgroups (one per CU) x 12 waves. Workgroup = (head h, split j).
  waves 0-2 : layernorm, 80-row slice of x@wq (MFMA, one-hot A operand), exchange of q partials inside the head,
              later the cross-wave o reduction, y reduction and (80 of them) the final output columns
  wave 3    : 40-row slice of gate/up for a pair of heads, exchange, h = g*u, 48x80 tile of w_down -> z partials
  waves 4-11: 32 keys each: K/V streamed to registers (counted vmcnt window), q.k by v_dot2, true-max softmax
              (flash-decoding combine of per-wave / per-workgroup maxima), P@V by MFMA, 24x80 tile of wo
Hand-offs go through d_ws. Every exchanged f32 carries one byte of a per-launch nonce (published in d_debug by
workgroup 0) in its low 8 bits, so stale or random d_ws contents are never accepted. Hand-offs inside a head use
plain stores + L1-bypassing loads only after the exchanged XCC ids prove that all partners share one L2; otherwise
a write-through (sc1) copy is used. Cross-head hand-offs (z, y) are always write-through. All spins are bounded;
s_sleep appears only as poll back-off.
""".strip().split("\n"):
        e.raw("; " + line)
    e.raw(f"; @launch grid=(256,1,1) block=(768,1,1) lds={LDS_BYTES}")
    e.raw('.amdgcn_target "amdgcn-amd-amdhsa--gfx950"')
    e.raw(".text")
    e.raw(f".globl {NAME}_kernel")
    e.raw(".p2align 8")
    e.raw(f".type {NAME}_kernel,@function")
    e.raw(f"{NAME}_kernel:")

    def stamp(i):
        if stamps:
            e(f"s_memrealtime s[{84 + 2 * i}:{85 + 2 * i}]")

    def stamps_flush(n):
        if not stamps:
            return
        e("s_waitcnt lgkmcnt(0)")
        e("s_mul_i32 s7, s6, 12")
        e("s_add_u32 s7, s7, s3")
        e("s_lshl_b32 s7, s7, 6")
        e(f"s_add_u32 s7, s7, {STAMP}")
        e("s_add_u32 s8, s38, s7")
        e("s_addc_u32 s9, s39, 0")
        e("s_mov_b32 s10, 64")
        e("s_mov_b32 s11, 0x20000")
        e("s_mov_b64 exec, 1")
        e("v_mov_b32 v1, 0")
        for i in range(n):
            e(f"v_mov_b32 v2, s{84 + 2 * i}")
            e(f"buffer_store_dword v2, v1, s[8:11], 0 offen offset:{4 * i}")
        e("s_waitcnt vmcnt(0)")

    def srd(d, blo, off, nbytes):
        if off is None:
            e(f"s_mov_b32 s{d}, s{blo}")
            e(f"s_mov_b32 s{d + 1}, s{blo + 1}")
        else:
            e(f"s_add_u32 s{d}, s{blo}, {off}")
            e(f"s_addc_u32 s{d + 1}, s{blo + 1}, 0")
        e(f"s_mov_b32 s{d + 2}, {nbytes}")
        e(f"s_mov_b32 s{d + 3}, 0x20000")

    def spin_check(lbl_retry, mult=1):
        e("s_add_u32 s80, s80, 1")
        e(f"s_cmp_lt_u32 s80, {SPIN_MAX * mult}")
        e(f"s_cbranch_scc1 {lbl_retry}")
        e("s_branch .Lend")

    def fallback_retry(tg, lbl_retry, vaddrs, storeB):
        e("s_add_u32 s80, s80, 1")
        e(f"s_cmp_lt_u32 s80, {FALLBACK}")
        e(f"s_cbranch_scc1 {lbl_retry}")
        e("s_cmp_lg_u32 s82, 0")
        e(f"s_cbranch_scc1 .Lfb_{tg}")
        storeB()
        e("s_mov_b32 s82, 1")
        e.label(f".Lfb_{tg}")
        for v in vaddrs:
            e(f"v_xor_b32 v{v}, 0x{BOFF:x}, v{v}")
        e(f"s_cmp_lt_u32 s80, {SPIN_MAX}")
        e(f"s_cbranch_scc1 {lbl_retry}")
        e("s_branch .Lend")

    def xcc_check(tg, vid, tmp, storeB):
        e("s_mov_b32 s80, 0")
        e("s_mov_b32 s83, 0")
        e(f"v_lshrrev_b32 v{tmp}, 8, v{vid}")
        e(f"v_cmp_ne_u32 vcc, s65, v{tmp}")
        e(f"s_cbranch_vccz .Lxc_{tg}")
        e(f"s_mov_b32 s83, 0x{BOFF:x}")
        e("s_cmp_lg_u32 s82, 0")
        e(f"s_cbranch_scc1 .Lxc_{tg}")
        storeB()
        e.label(f".Lxc_{tg}")

    NS = ["s81", "s61", "s62", "s63"]
    VFF = 31

    def nonce_regs():
        for k in range(1, 4):
            e(f"s_lshr_b32 {NS[k]}, s81, {8 * k}")

    def tag(dst, src, n):
        e(f"v_bfi_b32 v{dst}, v{VFF}, {n}, v{src}")

    def tags_ok(pairs, acc, ok_label):
        for i, (w, n) in enumerate(pairs):
            if i == 0:
                e(f"v_xor_b32 v{acc}, {n}, v{w}")
            else:
                e(f"v_bitop3_b32 v{acc}, v{acc}, v{w}, {n} bitop3:0xf6")
        e(f"v_and_b32 v{acc}, v{VFF}, v{acc}")
        e(f"v_cmp_ne_u32 vcc, 0, v{acc}")
        e(f"s_cbranch_vccz {ok_label}", safe_branch=True)

    def untag(regs):
        for r in regs:
            e(f"v_and_b32 v{r}, 0xffffff00, v{r}")

    SEL = 32

    def selectors(t0, t1, t2):
        e(f"v_bfe_u32 v{t0}, v0, 3, 1")
        e(f"v_mul_u32_u24 v{t0}, 0x202, v{t0}")
        e(f"v_add_u32 v{t0}, 0x100, v{t0}")
        e(f"v_and_b32 v{t1}, 1, v0")
        e(f"v_lshlrev_b32 v{t1}, 4, v{t1}")
        e(f"v_lshlrev_b32 v{t0}, v{t1}, v{t0}")
        e(f"v_mov_b32 v{t2}, 0x0c0c0000")
        e(f"v_lshrrev_b32 v{t2}, v{t1}, v{t2}")
        e(f"v_or_b32 v{t0}, v{t0}, v{t2}")
        e(f"v_bfe_u32 v{t1}, v0, 1, 2")
        e(f"v_mov_b32 v{t2}, 0x0c0c0c0c")
        for k in range(4):
            e(f"v_cmp_eq_u32 vcc, {k}, v{t1}")
            e(f"v_cndmask_b32 v{SEL + k}, v{t2}, v{t0}, vcc")

    DPPM = "row_mask:0xf bank_mask:0xf"
    P8 = ("quad_perm:[1,0,3,2]", "quad_perm:[2,3,0,1]", "row_half_mirror")
    P16 = P8 + ("row_mirror",)

    def row_sum(v):
        for pat in P16:
            e(f"v_add_f32_dpp v{v}, v{v}, v{v} {pat} {DPPM}")

    def rows4(v, op):
        for i in range(4):
            e(f"v_readlane_b32 s{12 + i}, v{v}, {16 * i}")
        e(f"v_mov_b32 v{v}, s12")
        for i in range(1, 4):
            e(f"{op} v{v}, s{12 + i}, v{v}")

    def bf16r(v, t):
        e(f"v_cvt_pk_bf16_f32 v{t}, v{v}, v{v}")
        e(f"v_lshlrev_b32 v{v}, 16, v{t}")

    def mfma(d, a, b, first):
        e(f"v_mfma_f32_16x16x32_bf16 v[{d}:{d + 3}], v[{a}:{a + 3}], v[{b}:{b + 3}], "
          + ("0" if first else f"v[{d}:{d + 3}]"))

    def rows_sum4(b, t):
        for sw in ("v_permlane16_swap_b32", "v_permlane32_swap_b32"):
            for r in range(4):
                e(f"v_mov_b32 v{t + r}, v{b + r}")
            for r in range(4):
                e(f"{sw} v{b + r}, v{t + r}")
            for r in range(4):
                e(f"v_add_f32 v{b + r}, v{b + r}, v{t + r}")

    def col_sum(b):
        e(f"v_permlane32_swap_b32 v{b}, v{b + 1}")
        e(f"v_permlane32_swap_b32 v{b + 2}, v{b + 3}")
        e(f"v_add_f32 v{b}, v{b}, v{b + 1}")
        e(f"v_add_f32 v{b + 2}, v{b + 2}, v{b + 3}")
        e(f"v_permlane16_swap_b32 v{b}, v{b + 2}")
        e(f"v_add_f32 v{b}, v{b}, v{b + 2}")
        for pat in ("row_ror:2", "row_ror:4", "row_ror:8"):
            e(f"v_add_f32_dpp v{b}, v{b}, v{b} {pat} {DPPM}")

    def round4(b, t):
        e(f"v_cvt_pk_bf16_f32 v{t}, v{b}, v{b + 1}")
        e(f"v_cvt_pk_bf16_f32 v{t + 1}, v{b + 2}, v{b + 3}")
        e(f"v_lshlrev_b32 v{b}, 16, v{t}")
        e(f"v_and_b32 v{b + 1}, 0xffff0000, v{t}")
        e(f"v_lshlrev_b32 v{b + 2}, 16, v{t + 1}")
        e(f"v_and_b32 v{b + 3}, 0xffff0000, v{t + 1}")

    SX, SW, SU, SD, SWS, SDBG = 40, 44, 48, 52, 56, 60
    WSR = f"s[{SWS}:{SWS + 3}]"
    e("s_cmp_ge_u32 s2, 256")
    e("s_cbranch_scc1 .Lend")
    e("s_load_dwordx16 s[16:31], s[0:1], 0")
    e("s_load_dwordx8 s[32:39], s[0:1], 64")
    e("s_memrealtime s[72:73]")
    if stamps:
        for i in range(1, 8):
            e(f"s_mov_b32 s{84 + 2 * i}, 0")
    stamp(0)
    e("v_lshrrev_b32 v1, 6, v0")
    e("v_and_b32 v0, 63, v0")
    e("v_readfirstlane_b32 s3, v1")
    e("s_cmp_ge_u32 s3, 4")
    e("s_cbranch_scc1 .Lkv", safe_branch=True)
    e("s_cmp_eq_u32 s3, 3")
    e("s_cbranch_scc1 .Lffn", safe_branch=True)

    def common():
        if badmap == 2:
            e("s_lshr_b32 s7, s2, 7")
            e("s_xor_b32 s2, s2, s7")
            e("s_lshr_b32 s7, s2, 3")
            e("s_and_b32 s7, s7, 1")
            e("s_xor_b32 s2, s2, s7")
        if badmap == 3:
            e("s_lshr_b32 s7, s2, 6")
            e("s_and_b32 s7, s7, 1")
            e("s_xor_b32 s2, s2, s7")
        e("s_and_b32 s7, s2, 7")
        e("s_lshr_b32 s8, s2, 3")
        e("s_lshr_b32 s9, s8, 3")
        e("s_lshl_b32 s4, s7, 2")
        e("s_add_u32 s4, s4, s9")
        e("s_and_b32 s5, s8, 7")
        if badmap == 1:
            e("s_lshr_b32 s4, s2, 3")
            e("s_and_b32 s5, s2, 7")
        e("s_lshl_b32 s6, s4, 3")
        e("s_add_u32 s6, s6, s5")
        e("s_mov_b32 s80, 0")
        e(f"s_mov_b32 s67, 0x{f2u(LOG2E):08x}")
        e("v_mov_b32 v18, 0")
        e(f"v_mov_b32 v{VFF}, 0xff")
        e("v_lshrrev_b32 v2, 3, v0")
        e("v_and_b32 v4, 7, v0")
        e("v_lshlrev_b32 v4, 4, v4")

    XS, XR = 10, 36
    PP = 20
    A = 36
    DAT = 44

    def helper_common():
        e("s_setprio 3")
        common()
        e("v_lshlrev_b32 v1, 4, v0")
        e("v_lshlrev_b32 v9, 2, v0")
        e("s_getreg_b32 s65, hwreg(HW_REG_XCC_ID, 0, 4)")
        e("s_lshl_b32 s66, s65, 8")
        e("s_mov_b32 s82, 0")

    helper_common()

    def xloads():
        srd(SX, 16, None, 1280)
        e(f"buffer_load_dwordx4 v[{XS}:{XS + 3}], v1, s[{SX}:{SX + 3}], 0 offen")
        e(f"buffer_load_dword v{XS + 4}, v9, s[{SX}:{SX + 3}], 0 offen offset:1024")
        e(f"buffer_load_dwordx4 v[{XR}:{XR + 3}], v3, s[{SX}:{SX + 3}], 0 offen")
        e(f"buffer_load_dword v{XR + 4}, v3, s[{SX}:{SX + 3}], 0 offen offset:16")

    def layernorm(nafter):
        if st0:
            stamp(7)
        e(f"s_waitcnt vmcnt({nafter})")
        if st0:
            stamp(3)
        for i in range(5):
            e(f"v_lshlrev_b32 v{PP + 2 * i}, 16, v{XS + i}")
            e(f"v_and_b32 v{PP + 2 * i + 1}, 0xffff0000, v{XS + i}")
        e(f"v_add_f32 v5, v{PP}, v{PP + 1}")
        for i in range(2, 10):
            e(f"v_add_f32 v5, v5, v{PP + i}")
        row_sum(5)
        rows4(5, "v_add_f32")
        e(f"v_mul_f32 v5, 0x{f2u(1.0 / 640):08x}, v5")
        e(f"v_sub_f32 v6, v{PP}, v5")
        e("v_mul_f32 v7, v6, v6")
        for i in range(1, 10):
            e(f"v_sub_f32 v6, v{PP + i}, v5")
            e("v_fmac_f32 v7, v6, v6")
        row_sum(7)
        rows4(7, "v_add_f32")
        e(f"v_mul_f32 v7, 0x{f2u(1.0 / 640):08x}, v7")
        bf16r(5, 6)
        bf16r(7, 6)
        e(f"v_add_f32 v7, 0x{f2u(1e-5):08x}, v7")
        bf16r(7, 6)
        e("v_sqrt_f32 v7, v7")
        bf16r(7, 6)
        e("v_rcp_f32 v8, v7")
        for i in range(5):
            a, b = 10, 11
            e(f"v_lshlrev_b32 v{a}, 16, v{XR + i}")
            e(f"v_and_b32 v{b}, 0xffff0000, v{XR + i}")
            e(f"v_sub_f32 v{a}, v{a}, v5")
            e(f"v_sub_f32 v{b}, v{b}, v5")
            e(f"v_cvt_pk_bf16_f32 v6, v{a}, v{b}")
            e(f"v_lshlrev_b32 v{a}, 16, v6")
            e(f"v_and_b32 v{b}, 0xffff0000, v6")
            for (x, dst) in ((a, PP + 2 * i), (b, PP + 2 * i + 1)):
                q, r = 12, 13
                e(f"v_mul_f32 v{q}, v{x}, v8")
                e(f"v_fma_f32 v{r}, -v{q}, v7, v{x}")
                e(f"v_fma_f32 v{q}, v{r}, v8, v{q}")
                e(f"v_cvt_pk_bf16_f32 v{dst}, v{q}, v{q}")

    def buildA(src, dst=None):
        dst = A if dst is None else dst
        for k in range(4):
            e(f"v_perm_b32 v{dst + k}, v{src}, v{src}, v{SEL + k}")

    def combine_halves(D, t0, t1):
        for r in range(4):
            e(f"v_mov_b32_dpp v{t0 + r}, v{D + r} row_ror:8 {DPPM}")
        for r in range(4):
            e(f"v_permlane32_swap_b32 v{t0 + r}, v{t1 + r}")
        for r in range(4):
            e(f"v_add_f32 v{D + r}, v{D + r}, v{t1 + r}")

    def nonce_wait(vF, tg):
        e.label(f".Lfl_{tg}")
        e("s_waitcnt vmcnt(0)")
        e(f"v_readfirstlane_b32 s81, v{vF}")
        e("s_cmp_lg_u32 s81, 0")
        e(f"s_cbranch_scc1 .Lfl_{tg}_ok")
        e("s_sleep 2")
        e(f"buffer_load_dword v{vF}, v18, s[{SDBG}:{SDBG + 3}], 0 offen sc1")
        spin_check(f".Lfl_{tg}")
        e.label(f".Lfl_{tg}_ok")
        e("s_mov_b32 s80, 0")
        nonce_regs()

    e("v_mul_u32_u24 v3, 20, v2")
    e("s_mul_i32 s7, s5, 160")
    e("v_add_u32 v3, s7, v3")
    e("s_mul_i32 s7, s5, 983040")
    e("s_mul_i32 s8, s4, 384")
    e("s_add_u32 s7, s7, s8")
    e("s_lshl_b32 s8, s3, 7")
    e("s_add_u32 s7, s7, s8")
    e("s_mov_b32 s8, 122880")
    e("v_mul_lo_u32 v5, v2, s8")
    e("v_add_u32 v5, v5, v4")
    if st0:
        stamp(5)
    e("s_or_b32 s9, s2, s3")
    e("s_waitcnt lgkmcnt(0)")
    if st0:
        stamp(6)
    e("s_cbranch_scc1 .Lnononce")
    srd(SDBG, 36, None, 256)
    e("s_bfe_u32 s10, s72, 0x70004")
    e("s_bfe_u32 s8, s72, 0x7000b")
    e("s_lshl_b32 s8, s8, 8")
    e("s_or_b32 s10, s10, s8")
    e("s_bfe_u32 s8, s72, 0x70012")
    e("s_lshl_b32 s8, s8, 16")
    e("s_or_b32 s10, s10, s8")
    e("s_bfe_u32 s8, s72, 0x60019")
    e("s_lshl_b32 s8, s8, 24")
    e("s_or_b32 s10, s10, s8")
    e("s_or_b32 s10, s10, 0x80808080")
    e("v_mov_b32 v6, s10")
    e("s_mov_b64 exec, 1")
    e(f"buffer_store_dword v6, v18, s[{SDBG}:{SDBG + 3}], 0 offen sc1")
    e("s_mov_b64 exec, -1")
    e.label(".Lnononce")
    xloads()
    srd(SW, 22, "s7", 79 * 12288 + 128)
    e("s_mov_b32 s7, 0")
    for t in range(10):
        e(f"buffer_load_dwordx4 v[{DAT + 4 * t}:{DAT + 4 * t + 3}], v5, s[{SW}:{SW + 3}], s7 offen{POL}")
        if t < 9:
            e("s_add_u32 s7, s7, 12288")
        if t == hpre - 1:
            e("s_barrier")
    srd(SWS, 38, None, WS_USED)
    srd(SDBG, 36, None, 256)
    e("s_cmp_lg_u32 s3, 0")
    e("s_cbranch_scc1 .Lnozf")
    for r in range(4):
        e(f"v_mov_b32 v{20 + r}, 0")
    e("s_lshl_b32 s7, s6, 10")
    e(f"s_add_u32 s7, s7, {OP}")
    e(f"buffer_store_dwordx4 v[20:23], v1, {WSR}, s7 offen")
    e.label(".Lnozf")
    if nearly:
        e(f"buffer_load_dword v19, v18, s[{SDBG}:{SDBG + 3}], 0 offen sc1")
    selectors(5, 6, 7)
    layernorm(10 + nearly)
    if not nearly:
        e(f"buffer_load_dword v19, v18, s[{SDBG}:{SDBG + 3}], 0 offen sc1")
    stamp(1)
    D = 84
    for t in range(10):
        buildA(PP + t)
        e(f"s_waitcnt vmcnt({10 - t})")
        mfma(D, A, DAT + 4 * t, t == 0)
    stamp(2)
    if floor:
        stamps_flush(8)
        e("s_endpgm")
    combine_halves(D, 88, 92)
    e("v_and_b32 v17, 15, v0")
    e("v_lshlrev_b32 v17, 5, v17")
    e("v_lshrrev_b32 v6, 4, v0")
    e("v_lshl_add_u32 v17, v6, 4, v17")
    e("s_lshl_b32 s10, s3, 16")
    e("s_lshl_b32 s7, s6, 8")
    e("s_add_u32 s10, s10, s7")
    e(f"s_add_u32 s11, s10, {BOFF}")
    e("s_lshl_b32 s9, s4, 9")
    e("s_lshl_b32 s7, s3, 7")
    e("s_add_u32 s9, s9, s7")
    e(f"s_add_u32 s9, s9, {QID}")
    e("s_lshl_b32 s7, s5, 4")
    e("s_add_u32 s7, s7, s9")
    e("s_sub_u32 s7, s7, s10")
    e("v_writelane_b32 v17, s7, 8")
    for r in range(4):
        e(f"v_writelane_b32 v{D + r}, s66, 8")
    e("s_lshl_b32 s8, s3, 16")
    e("s_lshl_b32 s7, s4, 11")
    e("s_add_u32 s8, s8, s7")
    e("v_mov_b32 v16, v4")
    if mlwarm:
        e("s_lshl_b32 s7, s3, 7")
        e("s_sub_u32 s7, 384, s7")
        e("v_writelane_b32 v16, s7, 8")
    nonce_wait(19, "q")
    for r in range(4):
        tag(D + r, D + r, NS[r])
    stamp(3)
    e("s_mov_b64 exec, 0x00ff01ff")
    e(f"buffer_store_dwordx4 v[{D}:{D + 3}], v17, {WSR}, s10 offen")
    e("s_mov_b64 exec, -1")
    def q_storeB():
        e("s_mov_b64 exec, 0x00ff01ff")
        e(f"buffer_store_dwordx4 v[{D}:{D + 3}], v17, {WSR}, s11 offen sc1")
        e("s_mov_b64 exec, -1")
    e("v_mov_b32 v15, v1")
    if qs0:
        e(f"s_sleep {qs0}")
    e.label(".Lqg")
    e(f"buffer_load_dwordx4 v[{DAT}:{DAT + 3}], v15, {WSR}, s8 offen sc1")
    e(f"buffer_load_dwordx4 v[{DAT + 4}:{DAT + 7}], v15, {WSR}, s8 offen offset:1024 sc1")
    e(f"s_mov_b64 exec, {'0x1ff' if mlwarm else '0xff'}")
    e(f"buffer_load_dwordx4 v[{DAT + 8}:{DAT + 11}], v16, {WSR}, s9 offen sc1")
    e("s_mov_b64 exec, 0xff")
    e("s_waitcnt vmcnt(0)")
    tags_ok([(DAT + 8 + k, NS[k]) for k in range(4)], 5, ".Lqg_id")
    e("s_mov_b64 exec, -1")
    e("s_branch .Lqg_re")
    e.label(".Lqg_id")
    e("s_mov_b64 exec, -1")
    tags_ok([(DAT + k, NS[k % 4]) for k in range(8)], 5, ".Lqg_ok")
    e.label(".Lqg_re")
    e(f"s_sleep {qs1}")
    fallback_retry("q", ".Lqg", [15, 16], q_storeB)
    e.label(".Lqg_ok")
    e("s_mov_b64 exec, 0xff")
    xcc_check("q", DAT + 8, 5, q_storeB)
    e("s_mov_b64 exec, -1")
    untag(range(DAT, DAT + 8))
    for r in range(4):
        e(f"v_add_f32 v{DAT + r}, v{DAT + r}, v{DAT + 4 + r}")
    rows_sum4(DAT, DAT + 4)
    e(f"v_cvt_pk_bf16_f32 v6, v{DAT}, v{DAT + 1}")
    e(f"v_cvt_pk_bf16_f32 v7, v{DAT + 2}, v{DAT + 3}")
    e("s_lshl_b32 s7, s3, 7")
    e("v_and_b32 v5, 15, v0")
    e("v_lshlrev_b32 v5, 3, v5")
    e("v_add_u32 v5, s7, v5")
    e(f"ds_write_b64 v5, v[6:7] offset:{QBUF}")
    e("v_mov_b32 v5, s83")
    e(f"ds_write_b32 v18, v5 offset:{QFL + 12}")
    e("s_lshl_b32 s7, s3, 2")
    e("v_mov_b32 v6, s7")
    e("v_mov_b32 v5, s81")
    e("s_waitcnt lgkmcnt(0)")
    e(f"ds_write_b32 v6, v5 offset:{QFL}")
    stamp(4)

    SO_ = 48
    e("s_lshl_b32 s75, s4, 13")
    e("s_lshl_b32 s7, s5, 4")
    e("s_add_u32 s75, s75, s7")
    e(f"s_add_u32 s75, s75, {OP}")
    e("s_add_u32 s75, s75, s83")
    e("s_lshl_b32 s76, s4, 9")
    e("s_add_u32 s76, s76, s7")
    e(f"s_add_u32 s76, s76, {QID + 384}")
    e("s_add_u32 s76, s76, s83")
    e("s_lshl_b32 s7, s3, 6")
    e("v_add_u32 v24, s7, v0")
    e("v_mul_u32_u24 v22, 0x5556, v24")
    e("v_lshrrev_b32 v22, 16, v22")
    e("v_mul_u32_u24 v21, 3, v22")
    e("v_sub_u32 v21, v24, v21")
    e("v_lshlrev_b32 v22, 7, v22")
    e("v_lshl_add_u32 v22, v21, 2, v22")
    e("v_lshlrev_b32 v21, 3, v21")
    e("v_lshrrev_b32 v30, v21, s81")
    e("v_lshlrev_b32 v24, 2, v24")
    e("s_mov_b32 s70, 0")
    e("s_cmp_lg_u32 s3, 0")
    e("s_cbranch_scc1 .Lnoz")
    e("s_and_b32 s74, s6, 31")
    e("s_cmp_ge_u32 s74, 10")
    e("s_cbranch_scc1 .Lnoz")
    e("s_mov_b32 s70, 1")
    e("s_lshr_b32 s7, s6, 5")
    e("s_mul_i32 s8, s7, 160")
    e("s_lshl_b32 s9, s74, 4")
    e("s_add_u32 s8, s8, s9")
    e("v_and_b32 v5, 1, v0")
    e("v_lshlrev_b32 v25, 3, v5")
    e("v_bfe_u32 v6, v0, 4, 1")
    e("v_lshl_add_u32 v25, v6, 2, v25")
    e("v_lshrrev_b32 v6, 5, v0")
    e("v_lshl_add_u32 v25, v6, 1, v25")
    e("v_add_u32 v25, s8, v25")
    e("s_lshl_b32 s9, s8, 6")
    e(f"s_add_u32 s73, s9, {ZP}")
    if ylay:
        e(f"s_add_u32 s71, s9, {YP}")
        e("v_mov_b32 v28, v1")
    else:
        e("v_lshrrev_b32 v28, 1, v0")
        e("v_mul_u32_u24 v28, 3072, v28")
        e("v_lshl_add_u32 v28, v5, 4, v28")
        e("s_mul_i32 s71, s7, 384")
        e("s_lshl_b32 s9, s74, 5")
        e("s_add_u32 s71, s71, s9")
        e(f"s_add_u32 s71, s71, {YP}")
    e("s_mov_b32 s78, 0x00030003")
    e("s_mov_b32 s79, 0x00030003")
    srd(SO_, 34, None, 1280)
    e.label(".Lnoz")
    e("s_cmp_eq_u32 s83, 0")
    e("s_cbranch_scc1 .Lnozb")
    e("s_cmp_lg_u32 s3, 2")
    e("s_cbranch_scc1 .Lnozb")
    for r in range(4):
        e(f"v_mov_b32 v{64 + r}, 0")
    e("v_lshlrev_b32 v12, 7, v0")
    e(f"buffer_store_dwordx4 v[64:67], v12, {WSR}, s75 offen sc1")
    e("s_waitcnt vmcnt(0)")
    e.label(".Lnozb")
    stamp(5)
    e.label(".Lms")
    for i in range(4):
        e(f"ds_read_b128 v[{40 + 4 * i}:{43 + 4 * i}], v18 offset:{MSL + 16 * i}")
    e("s_waitcnt lgkmcnt(0)")
    e("v_max3_u32 v19, v40, v41, v42")
    for i in range(6):
        e(f"v_max3_u32 v19, v19, v{43 + 2 * i}, v{44 + 2 * i}")
    e("v_max_u32 v19, v19, v55")
    e("v_cmp_eq_u32 vcc, -1, v19")
    e("s_cbranch_vccz .Lms_ok")
    e(f"s_sleep {mss}")
    spin_check(".Lms", 10)
    e.label(".Lms_ok")
    e("s_mov_b32 s80, 0")
    MX = 10
    e(f"v_max3_f32 v{MX}, v40, v41, v42")
    e(f"v_max3_f32 v{MX}, v{MX}, v43, v44")
    e(f"v_max3_f32 v{MX}, v{MX}, v45, v46")
    e(f"v_max_f32 v{MX}, v{MX}, v47")
    for i in range(8):
        e(f"v_sub_f32 v{40 + i}, v{40 + i}, v{MX}")
    for i in range(8):
        e(f"v_mul_f32 v{40 + i}, s67, v{40 + i}")
    for i in range(8):
        e(f"v_exp_f32 v{40 + i}, v{40 + i}")
    e("s_cmp_lg_u32 s3, 2")
    e("s_cbranch_scc1 .Lnol")
    e("v_mul_f32 v11, v40, v48")
    for i in range(1, 8):
        e(f"v_fmac_f32 v11, v{40 + i}, v{48 + i}")
    tag(56, 10, NS[0])
    tag(57, 11, NS[1])
    tag(58, 10, NS[2])
    tag(59, 11, NS[3])
    e("s_mov_b64 exec, 1")
    e("s_cmp_lg_u32 s83, 0")
    e("s_cbranch_scc1 .Lml_b")
    e(f"buffer_store_dwordx4 v[56:59], v18, {WSR}, s76 offen")
    e("s_branch .Lml_e")
    e.label(".Lml_b")
    e(f"buffer_store_dwordx4 v[56:59], v18, {WSR}, s76 offen sc1")
    e.label(".Lml_e")
    e("s_lshl_b32 s7, s5, 4")
    e("s_sub_u32 s76, s76, s7")
    e("s_mov_b64 exec, 0xff")
    e.label(".Lml")
    e(f"buffer_load_dwordx4 v[60:63], v4, {WSR}, s76 offen sc1")
    e("s_waitcnt vmcnt(0)")
    tags_ok([(60 + k, NS[k]) for k in range(4)], 5, ".Lml_ok")
    e(f"s_sleep {mlp}")
    spin_check(".Lml")
    e.label(".Lml_ok")
    e("s_mov_b32 s80, 0")
    untag([60, 61])
    e("v_mov_b32 v62, v60")
    for pat in P8:
        e(f"v_max_f32_dpp v62, v62, v62 {pat} {DPPM}")
    e("v_sub_f32 v60, v60, v62")
    e(f"v_sub_f32 v62, v{MX}, v62")
    e("v_mul_f32 v60, s67, v60")
    e("v_mul_f32 v62, s67, v62")
    e("v_exp_f32 v60, v60")
    e("v_exp_f32 v62, v62")
    e("v_mul_f32 v60, v60, v61")
    for pat in P8:
        e(f"v_add_f32_dpp v60, v60, v60 {pat} {DPPM}")
    e("v_rcp_f32 v60, v60")
    e("v_mul_f32 v60, v60, v62")
    e(f"ds_write_b32 v18, v60 offset:{VCN + 4}")
    e("s_mov_b64 exec, -1")
    e.label(".Lnol")
    e("s_cmp_eq_u32 s70, 0")
    e("s_cbranch_scc1 .Lnozl")
    e(f"buffer_load_ushort v26, v25, s[{SX}:{SX + 3}], 0 offen")
    e(f"buffer_load_dwordx4 v[100:103], v1, {WSR}, s73 offen sc1")
    e.label(".Lnozl")
    if ylay:
        e("s_mul_i32 s77, s5, 10240")
        e("s_lshl_b32 s7, s4, 5")
        e("s_add_u32 s77, s77, s7")
        e(f"s_add_u32 s77, s77, {YP}")
        e("v_lshrrev_b32 v23, 1, v0")
        e("v_lshlrev_b32 v23, 10, v23")
        e("v_and_b32 v5, 1, v0")
        e("v_lshl_add_u32 v23, v5, 4, v23")
    else:
        e("s_mul_i32 s77, s6, 384")
        e(f"s_add_u32 s77, s77, {YP}")
        e("v_mov_b32 v23, v1")
    e("s_cmp_lg_u32 s83, 0")
    e("s_waitcnt lgkmcnt(0)")
    e("s_barrier")
    e(f"ds_read_b32 v81, v18 offset:{VCN + 4}")
    for p in range(8):
        e(f"ds_read2st64_b32 v[{64 + 2 * p}:{65 + 2 * p}], v24 offset0:{OPART // 256 + 6 * p} offset1:{OPART // 256 + 6 * p + 3}")
    for p in range(8):
        e(f"s_waitcnt lgkmcnt({7 - p})")
        e(f"v_add_f32 v{64 + 2 * p}, v{64 + 2 * p}, v{65 + 2 * p}")
        if p < 2:
            e(f"v_mul_f32 v{82 + p}, v{40 + p}, v{64 + 2 * p}")
        else:
            e(f"v_fmac_f32 v{82 + p % 2}, v{40 + p}, v{64 + 2 * p}")
    e("v_add_f32 v80, v82, v83")
    e("v_mul_f32 v80, v80, v81")
    tag(80, 80, "v30")
    e("s_cbranch_scc1 .Lo_b", safe_branch=True)
    e(f"buffer_store_dword v80, v22, {WSR}, s75 offen")
    e.label(".Lo_e")
    stamp(6)
    e("s_cmp_eq_u32 s3, 1")
    e("s_cbranch_scc1 .Lyred")
    e("s_cmp_eq_u32 s70, 0")
    e("s_cbranch_scc1 .Lfin_stamp")
    e("s_waitcnt vmcnt(1)")
    tags_ok([(100 + r, NS[r]) for r in range(4)], 5, ".Lzg_ok")
    e("s_barrier")
    e("s_mov_b32 s70, 2")
    e.label(".Lzg")
    e(f"buffer_load_dwordx4 v[100:103], v1, {WSR}, s73 offen sc1")
    e("s_waitcnt vmcnt(0)")
    tags_ok([(100 + r, NS[r]) for r in range(4)], 5, ".Lzg_ok")
    spin_check(".Lzg")
    e.label(".Lzg_ok")
    e("s_mov_b32 s80, 0")
    untag(range(100, 104))
    col_sum(100)
    bf16r(100, 104)
    e("v_mul_f32 v104, s67, v100")
    e("v_exp_f32 v104, -v104")
    e("v_add_f32 v104, 1.0, v104")
    e("v_rcp_f32 v105, v104")
    e("v_mul_f32 v106, v100, v105")
    e("v_fma_f32 v107, -v106, v104, v100")
    e("v_fma_f32 v107, v107, v105, v106")
    e("v_cmp_o_f32 vcc, v107, v107")
    e("v_cndmask_b32 v100, v106, v107, vcc")
    bf16r(100, 104)
    e("v_lshlrev_b32 v108, 16, v26")
    e("s_cmp_eq_u32 s70, 2")
    e("s_cbranch_scc1 .Lyg")
    e("s_barrier")
    e.label(".Lyg")
    if ppy:
        e(f"buffer_load_dwordx4 v[92:95], v28, {WSR}, s71 offen sc1")
        e(f"s_sleep {ppy}")
        e.label(".Lyg1")
        e(f"buffer_load_dwordx4 v[96:99], v28, {WSR}, s71 offen sc1")
        e("s_waitcnt vmcnt(1)")
        tags_ok([(92 + r, NS[r]) for r in range(4)], 5, ".Lyg_ok")
        e(f"buffer_load_dwordx4 v[92:95], v28, {WSR}, s71 offen sc1")
        e("s_waitcnt vmcnt(1)")
        tags_ok([(96 + r, NS[r]) for r in range(4)], 5, ".Lyg_okb")
        spin_check(".Lyg1")
        e.label(".Lyg_okb")
        for k in range(4):
            e(f"v_and_b32 v{84 + k}, 0xffffff00, v{96 + k}")
        e("s_branch .Lyg_c")
    else:
        e(f"buffer_load_dwordx4 v[92:95], v28, {WSR}, s71 offen sc1")
        e("s_waitcnt vmcnt(0)")
        tags_ok([(92 + r, NS[r]) for r in range(4)], 5, ".Lyg_ok")
        spin_check(".Lyg")
    e.label(".Lyg_ok")
    for k in range(4):
        e(f"v_and_b32 v{84 + k}, 0xffffff00, v{92 + k}")
    e.label(".Lyg_c")
    col_sum(84)
    bf16r(84, 88)
    e("v_mul_f32 v84, v84, v100")
    bf16r(84, 88)
    e("v_add_f32 v84, v84, v108")
    e("v_cvt_pk_bf16_f32 v88, v84, v84")
    e("s_mov_b64 exec, s[78:79]")
    e(f"buffer_store_short v88, v25, s[{SO_}:{SO_ + 3}], 0 offen")
    if spank:
        e("s_cmp_lg_u32 s2, 0")
        e("s_cbranch_scc1 .Lfin_stamp")
        e("s_memrealtime s[8:9]")
        e("s_waitcnt lgkmcnt(0)")
        e("s_sub_u32 s10, s8, s72")
        e(f"s_mul_i32 s10, s10, {spank}")
        e("s_add_u32 s10, s10, s8")
        e.label(".Lspank")
        e("s_memrealtime s[8:9]")
        e("s_waitcnt lgkmcnt(0)")
        e("s_sub_u32 s11, s8, s10")
        e("s_cmp_lt_i32 s11, 0")
        e("s_cbranch_scc1 .Lspank")
    e.label(".Lfin_stamp")
    stamp(7)
    stamps_flush(8)
    e("s_endpgm")
    e.label(".Lo_b")
    e(f"buffer_store_dword v80, v22, {WSR}, s75 offen sc1")
    e("s_branch .Lo_e")
    e.label(".Lyred")
    e("s_mov_b64 exec, 0xfffff")
    if stamps:
        e("s_waitcnt lgkmcnt(0)")
    e("s_barrier")
    for p in range(8):
        e(f"ds_read_b128 v[{84 + 4 * p}:{87 + 4 * p}], v1 offset:{YPART + 384 * p}")
    for p in range(1, 8, 2):
        e(f"s_waitcnt lgkmcnt({7 - p})")
        for r in range(4):
            e(f"v_add_f32 v{80 + 4 * p + r}, v{80 + 4 * p + r}, v{84 + 4 * p + r}")
        if p == 3 or p == 7:
            for r in range(4):
                e(f"v_add_f32 v{72 + 4 * p + r}, v{72 + 4 * p + r}, v{80 + 4 * p + r}")
    for r in range(4):
        e(f"v_add_f32 v{84 + r}, v{84 + r}, v{100 + r}")
    for r in range(4):
        tag(84 + r, 84 + r, NS[r])
    e(f"buffer_store_dwordx4 v[84:87], v23, {WSR}, s77 offen sc1")
    e("s_branch .Lfin_stamp")

    e.label(".Lffn")
    helper_common()
    G0, U0, W0 = DAT, DAT + 40, 120
    e("s_and_b32 s68, s6, 15")
    e("s_lshr_b32 s69, s6, 4")
    e("v_lshrrev_b32 v42, 4, v0")
    e("v_and_b32 v43, 15, v0")
    e("v_mul_u32_u24 v3, 20, v42")
    e("s_mul_i32 s7, s68, 80")
    e("v_add_u32 v3, s7, v3")
    e("s_mul_i32 s7, s68, 122880")
    e("s_mul_i32 s8, s69, 192")
    e("s_add_u32 s7, s7, s8")
    e("v_mul_u32_u24 v5, 30720, v42")
    e("v_lshl_add_u32 v5, v43, 4, v5")
    e("v_cmp_gt_u32 vcc, 12, v43")
    e("v_mov_b32 v6, 0x7ffffff0")
    e("v_cndmask_b32 v5, v6, v5, vcc")
    if st0:
        stamp(5)
    e("s_waitcnt lgkmcnt(0)")
    if st0:
        stamp(6)
    xloads()
    srd(SW, 28, "s7", 39 * 3072 + 192)
    srd(SU, 30, "s7", 39 * 3072 + 192)
    e("s_mov_b32 s7, 0")
    for t in range(10):
        e(f"buffer_load_dwordx4 v[{G0 + 4 * t}:{G0 + 4 * t + 3}], v5, s[{SW}:{SW + 3}], s7 offen{POL}")
        e(f"buffer_load_dwordx4 v[{U0 + 4 * t}:{U0 + 4 * t + 3}], v5, s[{SU}:{SU + 3}], s7 offen{POL}")
        if t < 9:
            e("s_add_u32 s7, s7, 3072")
        if t == hpre // 2 - 1:
            e("s_barrier")
    srd(SWS, 38, None, WS_USED)
    srd(SDBG, 36, None, 256)
    if nearly:
        e(f"buffer_load_dword v19, v18, s[{SDBG}:{SDBG + 3}], 0 offen sc1")
    selectors(5, 7, 8)
    layernorm(20 + nearly)
    if not nearly:
        e(f"buffer_load_dword v19, v18, s[{SDBG}:{SDBG + 3}], 0 offen sc1")
    stamp(1)
    DG, DU = 10, 14
    for t in range(10):
        buildA(PP + t)
        e(f"s_waitcnt vmcnt({21 - 2 * t - 1})")
        mfma(DG, A, G0 + 4 * t, t == 0)
        e(f"s_waitcnt vmcnt({21 - 2 * t - 2})")
        mfma(DU, A, U0 + 4 * t, t == 0)
    stamp(2)
    e("v_lshlrev_b32 v40, 6, v43")
    e("v_and_b32 v6, 1, v42")
    e("v_lshl_add_u32 v40, v6, 5, v40")
    e("v_lshrrev_b32 v6, 1, v42")
    e("v_lshl_add_u32 v40, v6, 4, v40")
    e("s_mul_i32 s10, s6, 768")
    e(f"s_add_u32 s10, s10, {GU - GID}")
    e("v_add_u32 v40, s10, v40")
    e("s_lshl_b32 s7, s6, 4")
    e("v_writelane_b32 v40, s7, 12")
    e(f"s_mov_b32 s10, {GID}")
    e(f"s_mov_b32 s11, {GID + BOFF}")
    e("s_mov_b32 s78, 0")
    e("s_mov_b32 s79, -1")
    e(f"v_cndmask_b32 v60, v{DG}, v{DG + 2}, s[78:79]")
    e(f"v_cndmask_b32 v61, v{DU}, v{DU + 2}, s[78:79]")
    e(f"v_cndmask_b32 v62, v{DG + 1}, v{DG + 3}, s[78:79]")
    e(f"v_cndmask_b32 v63, v{DU + 1}, v{DU + 3}, s[78:79]")
    for r in range(4):
        e(f"v_writelane_b32 v{60 + r}, s66, 12")
    e("s_mov_b32 s78, 0x0fff1fff")
    e("s_mov_b32 s79, 0x0fff0fff")
    if floor:
        e("s_branch .Lffn_down")
    nonce_wait(19, "f")
    for r in range(4):
        tag(60 + r, 60 + r, NS[r])
    stamp(3)
    def f_store(so, pol):
        e("s_mov_b64 exec, s[78:79]")
        e(f"buffer_store_dwordx4 v[60:63], v40, {WSR}, {so} offen{pol}")
        e("s_mov_b64 exec, -1")
    f_store("s10", "")
    def f_storeB():
        f_store("s11", " sc1")
    e.label(".Lffn_down")
    if unev and floor:
        e("s_add_u32 s8, s5, 1")
        e("s_bitcmp1_b32 s8, 1")
        e("s_cbranch_scc1 .Lffn_skip")
    e("s_mul_i32 s7, s4, 61440")
    e("s_mul_i32 s8, s5, 160")
    e("s_add_u32 s7, s7, s8")
    srd(SD, 32, "s7", 47 * 1280 + 160)
    e("v_mul_u32_u24 v5, 15360, v42")
    e("v_lshl_add_u32 v5, v43, 4, v5")
    e("v_cmp_gt_u32 vcc, 10, v43")
    e("v_mov_b32 v6, 0x7ffffff0")
    e("v_cndmask_b32 v5, v6, v5, vcc")
    e("s_mov_b32 s7, 0")
    for qq in range(12):
        e(f"buffer_load_dwordx4 v[{W0 + 4 * qq}:{W0 + 4 * qq + 3}], v5, s[{SD}:{SD + 3}], s7 offen{POL}")
        if qq < 11:
            e("s_add_u32 s7, s7, 1280")
    if floor:
        e("s_waitcnt vmcnt(0)")
        if unev:
            e("s_xor_b32 s8, s5, 1")
            e("s_mul_i32 s8, s8, 160")
            e("s_mul_i32 s7, s4, 61440")
            e("s_add_u32 s7, s7, s8")
            srd(SD, 32, "s7", 47 * 1280 + 160)
            e("s_mov_b32 s7, 0")
            for qq in range(12):
                e(f"buffer_load_dwordx4 v[{W0 + 4 * qq}:{W0 + 4 * qq + 3}], v5, s[{SD}:{SD + 3}], s7 offen{POL}")
                if qq < 11:
                    e("s_add_u32 s7, s7, 1280")
            e("s_waitcnt vmcnt(0)")
        e.label(".Lffn_skip")
        stamp(4)
        stamps_flush(8)
        e("s_endpgm")
    e("s_mul_i32 s8, s69, 12288")
    e("s_and_b32 s7, s4, 1")
    e("s_mul_i32 s7, s7, 384")
    e("s_add_u32 s8, s8, s7")
    e(f"s_add_u32 s8, s8, {GU}")
    for i in range(1, 4):
        e(f"s_add_u32 s{72 + i}, s8, {3072 * i}")
    e("s_lshl_b32 s9, s69, 8")
    e(f"s_add_u32 s9, s9, {GID}")
    e("v_and_b32 v9, 31, v0")
    e("v_min_u32 v9, 23, v9")
    e("v_lshrrev_b32 v6, 5, v0")
    e("v_mul_u32_u24 v5, 768, v6")
    e("v_lshl_add_u32 v5, v9, 4, v5")
    e("v_lshlrev_b32 v41, 4, v43")
    if gs0:
        e(f"s_sleep {gs0}")
    e.label(".Lgg")
    for i in range(8):
        so = "s8" if i < 2 else f"s{72 + i // 2}"
        e(f"buffer_load_dwordx4 v[{68 + 4 * i}:{71 + 4 * i}], v5, {WSR}, {so} offen offset:{(i % 2) * 1536} sc1")
    e("s_mov_b64 exec, 0xffff")
    e(f"buffer_load_dwordx4 v[100:103], v41, {WSR}, s9 offen sc1")
    e("s_waitcnt vmcnt(0)")
    tags_ok([(100 + k, NS[k]) for k in range(4)], 6, ".Lgg_id")
    e("s_mov_b64 exec, -1")
    e("s_branch .Lgg_re")
    e.label(".Lgg_id")
    e("s_mov_b64 exec, -1")
    tags_ok([(68 + k, NS[k % 4]) for k in range(32)], 6, ".Lgg_ok")
    e.label(".Lgg_re")
    e(f"s_sleep {qs1}")
    fallback_retry("f", ".Lgg", [5, 41], f_storeB)
    e.label(".Lgg_ok")
    e("s_mov_b64 exec, 0xffff")
    xcc_check("f", 100, 6, f_storeB)
    e("s_mov_b64 exec, -1")
    untag(range(68, 100))
    for i in range(1, 8):
        for r in range(4):
            e(f"v_add_f32 v{68 + r}, v{68 + r}, v{68 + 4 * i + r}")
    for r in range(4):
        e(f"v_mov_b32 v{72 + r}, v{68 + r}")
    for r in range(4):
        e(f"v_permlane32_swap_b32 v{68 + r}, v{72 + r}")
    for r in range(4):
        e(f"v_add_f32 v{68 + r}, v{68 + r}, v{72 + r}")
    round4(68, 72)
    e("v_mul_f32 v68, v68, v69")
    e("v_mul_f32 v70, v70, v71")
    e("v_cvt_pk_bf16_f32 v6, v68, v70")
    e("v_lshlrev_b32 v5, 2, v9")
    e(f"ds_write_b32 v5, v6 offset:{HBUF}")
    e("v_mul_u32_u24 v5, 24, v42")
    e("s_waitcnt lgkmcnt(0)")
    for i in range(3):
        e(f"ds_read_b64 v[{70 + 2 * i}:{71 + 2 * i}], v5 offset:{HBUF + 8 * i}")
    e("s_waitcnt lgkmcnt(0)")
    DZ = 10
    for qq in range(12):
        src = 70 + qq // 2
        if qq % 2 == 0:
            e(f"v_and_b32 v6, 0xffff, v{src}")
        else:
            e(f"v_lshrrev_b32 v6, 16, v{src}")
        buildA(6)
        mfma(DZ, A, W0 + 4 * qq, qq == 0)
    e("v_lshlrev_b32 v5, 10, v43")
    e("v_lshl_add_u32 v5, v42, 4, v5")
    e("s_mul_i32 s8, s5, 10240")
    e("s_lshl_b32 s7, s4, 5")
    e("s_add_u32 s8, s8, s7")
    e(f"s_add_u32 s8, s8, {ZP}")
    for r in range(4):
        tag(DZ + r, DZ + r, NS[r])
    e("s_mov_b64 exec, 0x03ff03ff")
    e(f"buffer_store_dwordx4 v[{DZ}:{DZ + 3}], v5, {WSR}, s8 offen sc1")
    stamp(4)
    stamps_flush(5)
    e("s_endpgm")

    e.label(".Lkv")
    common()
    SK, SV, SO = 40, 44, 48
    K0, V0, WO, S0 = 40, 88, 136, 8
    QR = [160, 164, 20]
    if st0:
        stamp(2)
    e("s_sub_u32 s64, s3, 4")
    e("v_mul_u32_u24 v3, 384, v2")
    e("v_add_u32 v3, v3, v4")
    e("s_mul_i32 s7, s4, 3145728")
    e("s_mul_i32 s8, s5, 98304")
    e("s_add_u32 s7, s7, s8")
    e("s_mul_i32 s8, s64, 12288")
    e("s_add_u32 s7, s7, s8")
    e(f"s_add_u32 s7, s7, {6144 * 384}")
    ra, rb, rc, rd = [int(ch) for ch in str(rot)[1:]]
    e(f"s_mul_i32 s8, s64, {ra}")
    if rb:
        e(f"s_mul_i32 s9, s5, {rb}")
        e("s_add_u32 s8, s8, s9")
    if rc:
        e(f"s_mul_i32 s9, s4, {rc}")
        e("s_add_u32 s8, s8, s9")
    if rd:
        e("s_lshr_b32 s9, s4, 2")
        e(f"s_mul_i32 s9, s9, {rd}")
        e("s_add_u32 s8, s8, s9")
    for t in range(4):
        e(f"s_add_u32 s9, s8, {t}")
        e("s_and_b32 s9, s9, 3")
        e(f"s_mul_i32 s{74 + t}, s9, 3072")
    e("s_cmp_lg_u32 s3, 11")
    e("s_cbranch_scc1 .Lnoinit")
    e("v_min_u32 v5, 20, v0")
    e("v_lshlrev_b32 v5, 2, v5")
    e("v_mov_b32 v6, -1")
    e(f"ds_write_b32 v5, v6 offset:{MSL}")
    e.label(".Lnoinit")
    e("s_waitcnt lgkmcnt(0)")
    if st0:
        stamp(3)
    srd(SK, 18, "s7", 12288)
    if touch:
        e("s_cmp_lg_u32 s3, 10")
        e("s_cbranch_scc1 .Lnotouch")
        e("s_mov_b64 exec, 1")
        srd(SV, 20, "s7", 12288)
        e(f"buffer_load_dword v8, v18, s[{SV}:{SV + 3}], 0 offen nt")
        e("s_mul_i32 s8, s4, 245760")
        srd(SO, 24, "s8", 245760)
        e(f"buffer_load_dword v9, v18, s[{SO}:{SO + 3}], 0 offen nt")
        e("s_mul_i32 s8, s4, 61440")
        srd(SO, 32, "s8", 61440)
        e(f"buffer_load_dword v10, v18, s[{SO}:{SO + 3}], 0 offen nt")
        srd(SWS, 38, None, WS_USED)
        e(f"s_mov_b32 s8, {WS_USED - 4096}")
        e(f"buffer_load_dword v11, v18, {WSR}, s8 offen nt")
        srd(SO, 34, None, 1280)
        e(f"buffer_load_dword v12, v18, s[{SO}:{SO + 3}], 0 offen nt")
        e("s_mov_b64 exec, -1")
        e.label(".Lnotouch")

    def side_work(n):
        if n == kvpre:
            e("s_barrier")
        if n == TH:
            srd(SV, 20, "s7", 12288)
            srd(SWS, 38, None, WS_USED)
            e("v_and_b32 v1, 15, v0")
            e("v_lshrrev_b32 v2, 4, v0")
            e("v_mul_u32_u24 v6, 7680, v2")
            e("v_lshl_add_u32 v6, v1, 4, v6")
            if unev:
                e("s_lshl_b32 s8, s5, 2")
                e("s_and_b32 s8, s8, 12")
                e("s_lshr_b32 s9, 0x8520, s8")
                e("s_and_b32 s9, s9, 15")
                e("s_lshr_b32 s8, s5, 2")
                e("s_mul_i32 s8, s8, 10")
                e("s_add_u32 s9, s9, s8")
                e("s_lshl_b32 s9, s9, 6")
                e("s_add_u32 s8, s5, 1")
                e("s_bitcmp1_b32 s8, 1")
                e("s_cselect_b32 s10, 12, 8")
                e("v_cmp_gt_u32 vcc, s10, v1")
            else:
                e("v_cmp_gt_u32 vcc, 10, v1")
                e("s_mul_i32 s9, s5, 160")
            e("v_mov_b32 v7, 0x7ffffff0")
            e("v_cndmask_b32 v6, v7, v6, vcc")
            e("s_mul_i32 s7, s4, 245760")
            e("s_mul_i32 s8, s64, 30720")
            e("s_add_u32 s7, s7, s8")
            e("s_add_u32 s7, s7, s9")
            srd(SO, 24, "s7", 23 * 1280 + (128 if unev else 160))
            if unev:
                e("s_lshl_b32 s10, s10, 4")
                e(f"s_add_u32 s{SO + 2}, s10, {23 * 1280}")
            e("s_movk_i32 s66, 3840")
            selectors(7, 8, 9)
            e("v_lshrrev_b32 v16, 5, v0")
            e("v_mul_u32_u24 v16, 768, v16")
            e("v_lshl_add_u32 v16, v4, 1, v16")
            e("v_and_b32 v13, 1, v2")
            e("v_lshl_add_u32 v16, v13, 4, v16")
            e("s_mul_i32 s7, s64, 1536")
            e("v_add_u32 v16, s7, v16")
            e("s_lshl_b32 s7, s64, 2")
            e("v_mov_b32 v17, s7")
            e("v_lshlrev_b32 v14, 4, v0")
            e("s_lshl_b32 s69, s4, 13")
            e("s_lshl_b32 s7, s64, 10")
            e("s_add_u32 s69, s69, s7")
            e(f"s_add_u32 s69, s69, {OP}")
            e("v_lshlrev_b32 v19, 5, v1")
            e("v_lshl_add_u32 v19, v2, 4, v19")
            e("s_mul_i32 s7, s64, 384")
            e("v_add_u32 v19, s7, v19")
            e("s_mov_b32 s78, 0x00ff00ff")
            e("s_mov_b32 s79, 0xff00ff00")
            e(f"s_mov_b32 s70, 0x{f2u(192.0 ** -0.5):08x}")
            if xb:
                packed = sum(int(ch) << (4 * i) for i, ch in enumerate(f"{xb:08d}"))
                e("s_lshr_b32 s8, s4, 2")
                e("s_lshl_b32 s8, s8, 2")
                e(f"s_lshr_b32 s72, 0x{packed:08x}, s8")
                e("s_and_b32 s72, s72, 15")
    MX, AP, O = 12, 40, 56

    def chunkA():
        e.label(".Lqs")
        e(f"ds_read_b128 v[36:39], v18 offset:{QFL}")
        for r3 in range(3):
            e(f"ds_read_b128 v[{QR[r3]}:{QR[r3] + 3}], v4 offset:{QBUF + 128 * r3}")
        e("s_waitcnt lgkmcnt(0)")
        e("v_max3_u32 v13, v36, v37, v38")
        e("v_cmp_eq_u32 vcc, -1, v13")
        e("s_cbranch_vccz .Lqs_ok")
        e("s_sleep 2")
        spin_check(".Lqs", 10)
        e.label(".Lqs_ok")
        e("s_mov_b32 s80, 0")
        e("v_readfirstlane_b32 s81, v36")
        e("v_add_u32 v14, v14, v39")
        stamp(2)
        for i in range(12):
            for t in range(4):
                q = QR[i // 4] + i % 4
                if i == 0:
                    e(f"v_dot2_f32_bf16 v{S0 + t}, v{K0 + 12 * t + i}, v{q}, 0")
                else:
                    e(f"v_dot2_f32_bf16 v{S0 + t}, v{K0 + 12 * t + i}, v{q}, v{S0 + t}")
        nonce_regs()

    def chunkB():
        for pat in P8:
            for t in range(4):
                e(f"v_add_f32_dpp v{S0 + t}, v{S0 + t}, v{S0 + t} {pat} {DPPM}")
        stamp(3)
        round4(S0, 36)
        for t in range(4):
            e(f"v_mul_f32 v{S0 + t}, s70, v{S0 + t}")
        round4(S0, 36)
        e(f"v_max3_f32 v{MX}, v{S0}, v{S0 + 1}, v{S0 + 2}")
        e(f"v_max_f32 v{MX}, v{MX}, v{S0 + 3}")
        e(f"v_max_f32_dpp v{MX}, v{MX}, v{MX} row_ror:8 {DPPM}")
        rows4(MX, "v_max_f32")
        e(f"v_min_u32 v13, -2, v{MX}")
        e(f"ds_write_b32 v17, v13 offset:{MSL}")

    def chunkC():
        for t in range(4):
            e(f"v_sub_f32 v{S0 + t}, v{S0 + t}, v{MX}")
        for t in range(4):
            e(f"v_mul_f32 v{S0 + t}, s67, v{S0 + t}")
        for t in range(4):
            e(f"v_exp_f32 v{S0 + t}, v{S0 + t}")
        e(f"v_add_f32 v13, v{S0}, v{S0 + 1}")
        e(f"v_add_f32 v13, v13, v{S0 + 2}")
        e(f"v_add_f32 v13, v13, v{S0 + 3}")
        for t in range(4):
            e(f"v_cvt_pk_bf16_f32 v{36 + t}, v{S0 + t}, v{S0 + t}")
        e(f"v_add_f32_dpp v13, v13, v13 row_ror:8 {DPPM}")
        rows4(13, "v_add_f32")
        e(f"v_min_u32 v13, -2, v13")
        e(f"ds_write_b32 v17, v13 offset:{LSL}")
        for t in range(4):
            buildA(36 + t, AP + 4 * t)
        stamp(4)

    def wo_load(a):
        r = WO + 4 * a
        e(f"buffer_load_dwordx4 v[{r}:{r + 3}], v6, s[{SO}:{SO + 3}], {'s66' if a >= 3 else '0'} offen offset:{1280 * (a % 3)}{POL}")

    kv = [("k", m) for m in range(12)] + [("v", m) for m in range(12)]
    if wo_mode == 0:
        seq = kv
        win = [TH] * 24
    elif wo_mode == 1:
        seq = kv[:12] + [("w", a) for a in range(6)] + kv[12:]
        win = [TH] * 12 + [TH + 1] + [TW] * 6 + [TH + 1] + [TH] * 10
    elif wo_mode == 2:
        seq = []
        for i in range(6):
            seq += kv[3 + 2 * i - 3 + 3: 3 + 2 * i + 2] if False else []
        seq = kv[:4]
        for i in range(6):
            seq += [("w", i)] + kv[4 + 2 * i: 6 + 2 * i]
        seq += kv[16:]
        win = [TH] * 5 + [TH + 1] * 17 + [TH] * 8
    elif wo_mode == 3:
        ne = 6 - wo_late
        seq = kv[:12] + [("w", a) for a in range(ne)] + kv[12:]
        win = [TH] * 12 + [TH + 1] * (ne + 2) + [TH] * 10
    for i in range(vopen):
        win[len(seq) - vopen + i] = TH + 1 + i
    pos = {x: n for n, x in enumerate(seq)}
    nq = pos[("v", nqk - 12)]
    landed = -1
    pv_done = 0
    for n, (kind, m) in enumerate(seq):
        side_work(n)
        xbmax = max(int(ch) for ch in f"{xb:08d}")
        if xb and xb0 <= n < xb0 + xbmax:
            lab = e.newlabel("Lk")
            e(f"s_waitcnt vmcnt({win[n]})")
            e(f"s_cmp_gt_u32 s72, {n - xb0}")
            e(f"s_cbranch_scc1 {lab}")
            e(f"s_waitcnt vmcnt({win[n] - 1})")
            e.label(lab)
            landed = max(landed, n - win[n] - 1)
        elif n >= win[n]:
            e(f"s_waitcnt vmcnt({win[n] - 1})")
            landed = max(landed, n - win[n])
        if kind == "w":
            wo_load(m)
        else:
            S, R0 = (SK, K0) if kind == "k" else (SV, V0)
            r = R0 + 4 * m
            e(f"buffer_load_dwordx4 v[{r}:{r + 3}], v3, s[{S}:{S + 3}], s{74 + m // 3} offen offset:{128 * (m % 3)}{POL}")
        if floor:
            if st0:
                if n == 3:
                    stamp(4)
            elif n in (6, 12, 18):
                stamp({6: 2, 12: 3, 18: 4}[n])
            continue
        if n == nq:
            assert landed >= pos[("k", 11)]
            chunkA()
        if n == nq + 1:
            chunkB()
        if n == nq + 2:
            chunkC()
        if n > nq + 2 or n == len(seq) - 1:
            while pv_done < 12 and pos[("v", pv_done)] <= landed:
                mfma(O + 4 * (pv_done % 3), AP + 4 * (pv_done // 3), V0 + 4 * pv_done, pv_done < 3)
                pv_done += 1
    NL = 6 if wo_mode == 0 else (wo_late if wo_mode == 3 else 0)
    if wo_mode in (1, 2):
        wo_wait = TH
    stamp(1)
    if vrv:
        e("v_mov_b32 v13, 1")
        e("s_mov_b64 exec, 1")
        e(f"ds_add_u32 v18, v13 offset:{VCN}")
        e("s_mov_b64 exec, -1")
        e.label(".Lvr")
        e(f"ds_read_b32 v13, v18 offset:{VCN}")
        e("s_waitcnt lgkmcnt(0)")
        e(f"v_cmp_le_i32 vcc, {vrv - 1}, v13")
        e("s_cbranch_vccnz .Lvr_ok")
        e("s_sleep 1")
        spin_check(".Lvr", 10)
        e.label(".Lvr_ok")
        e("s_mov_b32 s80, 0")
    if wo_wait < TH:
        if not floor:
            while pv_done < 12 - wo_wait:
                e(f"s_waitcnt vmcnt({11 - pv_done})")
                if pv_done == 11 - wo_wait:
                    break
                mfma(O + 4 * (pv_done % 3), AP + 4 * (pv_done // 3), V0 + 4 * pv_done, pv_done < 3)
                pv_done += 1
        else:
            e(f"s_waitcnt vmcnt({wo_wait})")
    for qq in range(6 - NL, 6):
        wo_load(qq)
    if floor:
        e(f"s_waitcnt vmcnt({NL})")
        stamp(5)
        e("s_waitcnt vmcnt(0)")
        stamp(6)
        stamps_flush(7)
        e("s_endpgm")
    while pv_done < 12:
        e(f"s_waitcnt vmcnt({11 + NL - pv_done})")
        mfma(O + 4 * (pv_done % 3), AP + 4 * (pv_done // 3), V0 + 4 * pv_done, pv_done < 3)
        pv_done += 1
    e("s_mov_b64 exec, s[78:79]")
    for r3 in range(3):
        e(f"ds_write_b128 v16, v[{O + 4 * r3}:{O + 4 * r3 + 3}] offset:{OPART + 256 * r3}")
    e("s_mov_b64 exec, -1")
    stamp(5)
    e("s_waitcnt lgkmcnt(0)")
    e("s_barrier")
    if od:
        e(f"s_sleep {od}")
    if pp:
        e(f"buffer_load_dwordx3 v[64:66], v14, {WSR}, s69 offen sc1")
        e(f"s_sleep {pp}")
        e.label(".Log")
        e(f"buffer_load_dwordx3 v[68:70], v14, {WSR}, s69 offen sc1")
        e("s_waitcnt vmcnt(1)")
        tags_ok([(64 + k, NS[k]) for k in range(3)], 72, ".Log_ok")
        e(f"buffer_load_dwordx3 v[64:66], v14, {WSR}, s69 offen sc1")
        e("s_waitcnt vmcnt(1)")
        tags_ok([(68 + k, NS[k]) for k in range(3)], 72, ".Log_okb")
        spin_check(".Log")
        e.label(".Log_okb")
        for k in range(3):
            e(f"v_and_b32 v{76 + k}, 0xffffff00, v{68 + k}")
        e("s_branch .Log_c")
    else:
        e.label(".Log")
        e(f"buffer_load_dwordx3 v[64:66], v14, {WSR}, s69 offen sc1")
        e("s_waitcnt vmcnt(0)")
        tags_ok([(64 + k, NS[k]) for k in range(3)], 72, ".Log_ok")
        spin_check(".Log")
    e.label(".Log_ok")
    for k in range(3):
        e(f"v_and_b32 v{76 + k}, 0xffffff00, v{64 + k}")
    e.label(".Log_c")
    stamp(6)
    for pat in P8:
        for r in range(3):
            e(f"v_add_f32_dpp v{76 + r}, v{76 + r}, v{76 + r} {pat} {DPPM}")
    for r in range(3):
        e(f"v_cvt_pk_bf16_f32 v{76 + r}, v{76 + r}, 0")
    Y = 72
    buildA(76, 88)
    for r in range(3):
        e(f"v_mov_b32_dpp v{80 + r}, v{76 + r} row_ror:8 {DPPM}")
    src = [76, 77, 78, 80, 81, 82]
    for qq in range(6):
        if qq < 5:
            buildA(src[qq + 1], 92 + 4 * qq)
        mfma(Y, 88 + 4 * qq, WO + 4 * qq, qq == 0)
    e("s_mov_b64 exec, 0x03ff03ff")
    e(f"ds_write_b128 v19, v[{Y}:{Y + 3}] offset:{YPART}")
    e("s_waitcnt lgkmcnt(0)")
    e("s_barrier")
    stamp(7)
    stamps_flush(8)
    e.label(".Lend")
    e("s_endpgm")

    e.raw('.section .rodata,"a"')
    e.raw(".p2align 6")
    e.raw(f".amdhsa_kernel {NAME}_kernel")
    e.raw("  .amdhsa_next_free_vgpr 168")
    e.raw("  .amdhsa_next_free_sgpr 102")
    e.raw("  .amdhsa_accum_offset 168")
    e.raw("  .amdhsa_group_segment_fixed_size 0")
    e.raw("  .amdhsa_kernarg_size 96")
    e.raw("  .amdhsa_user_sgpr_count 2")
    e.raw("  .amdhsa_user_sgpr_kernarg_segment_ptr 1")
    e.raw("  .amdhsa_system_sgpr_workgroup_id_x 1")
    e.raw("  .amdhsa_float_denorm_mode_32 3")
    e.raw(".end_amdhsa_kernel")
    return e.text()


if __name__ == "__main__":
    import argparse, inspect
    ap = argparse.ArgumentParser()
    ap.add_argument("-o", default=f"cdna_kernels/{NAME}.s")
    sig = inspect.signature(gen)
    for nm, p in sig.parameters.items():
        if isinstance(p.default, bool):
            ap.add_argument("--" + nm, action="store_true")
        else:
            ap.add_argument("--" + nm, type=int, default=p.default)
    a = vars(ap.parse_args())
    o = a.pop("o")
    open(o, "w").write(gen(**a))
    print("wrote", o)
```
